```python
import torch

def _softmax(x, axis=-1):
    return torch.softmax(x, dim=axis)

def _gelu(x):
    return torch.nn.functional.gelu(x, approximate='tanh')

def _silu(x):
    return torch.nn.functional.silu(x)

def _sigmoid(x):
    return torch.sigmoid(x)

def _layernorm(x, axis=-1, eps=1e-05):
    m = x.mean(dim=axis, keepdim=True)
    v = x.var(dim=axis, keepdim=True, unbiased=False)
    return (x - m) / torch.sqrt(v + eps)

def _scatter_add(tgt, idx, src, axis=0):
    return tgt.clone().index_add_(axis, idx, src)

def _segment_sum(src, seg, n):
    out = torch.zeros((n,) + src.shape[1:], dtype=src.dtype)
    return out.index_add_(0, seg, src)

def _pad(x, pw):
    flat = tuple((v for pair in reversed(pw) for v in pair))
    return torch.nn.functional.pad(x, flat)
kernel_name = 'standalone__factorization_afm__recsys'

def setup_inputs():

    _w = lambda a: (lambda t: t.to(torch.bfloat16) if t.is_floating_point() else t)(torch.as_tensor(a))
    B, F, D, V = (4096, 26, 128, min(1000, 100000))
    A = D
    ii, jj = tuple(torch.triu_indices(F, F, 1).unbind(0))
    return {'idx': _w((lambda lo, hi, *s: torch.randint(lo, hi, s))(0, V, B, F).to(torch.int64)), 'table': _w((lambda *s: torch.randn(*s, dtype=torch.bfloat16) * 0.2)(V, D)), 'ii': _w(ii.to(torch.int64)), 'jj': _w(jj.to(torch.int64)), 'W': _w((lambda *s: torch.randn(*s, dtype=torch.bfloat16) * 1.6)(D, A) * (1.0 / D ** 0.5)), 'b': _w((lambda *s: torch.randn(*s, dtype=torch.bfloat16) * 1.6)(A)), 'h': _w((lambda *s: torch.randn(*s, dtype=torch.bfloat16) * 1.6)(A)), 'p': _w((lambda *s: torch.randn(*s, dtype=torch.bfloat16) * 0.2)(D))}

def reference(idx, table, ii, jj, W, b, h, p):
    emb = table[idx]
    ei = emb[:, ii, :].clone()
    ej = emb[:, jj, :].clone()
    pair = ei * ej
    hid = pair @ W + b
    hid = 0.5 * (hid + torch.abs(hid))
    e = hid @ h
    alpha = _softmax(e, axis=-1)
    pooled = torch.einsum('bp,bpd->bd', alpha, pair)
    return pooled @ p
```

```python
import sys

KN = 'standalone__factorization_afm__recsys'
HDR = open('cdna_kernels/%s.s.ref' % KN).read().split('; Override')[0]

class Asm:
    def __init__(self): self.L = []
    def __call__(self, s): self.L.append('  ' + s)
    def label(self, s): self.L.append(s + ':')
    def raw(self, s): self.L.append(s)
    def text(self): return '\n'.join(self.L) + '\n'

def vr(a, n=1): return f'v{a}' if n == 1 else f'v[{a}:{a+n-1}]'
def ar(a, n=1): return f'a{a}' if n == 1 else f'a[{a}:{a+n-1}]'
def sr(a, n=1): return f's{a}' if n == 1 else f's[{a}:{a+n-1}]'

T_ROWS = 504
MISC = T_ROWS * 256
WOFF = 131072
AUXA = WOFF
AUX = WOFF + 4096
LDS_K1 = 163840
LOG2E = 1.4426950408889634
import struct
def f2u(f): return struct.unpack('<I', struct.pack('<f', f))[0]

def k1(A):
    name = 'afm_table_kernel'
    A.raw(f'.globl {name}\n.p2align 8\n.type {name},@function')
    A.label(name)
    A('s_cmp_ge_u32 s2, 250')
    A('s_cbranch_scc1 L1_end')
    A('s_load_dwordx16 s[4:19], s[0:1], 0')
    A('s_load_dwordx2 s[24:25], s[0:1], 80')
    A('v_and_b32 v255, 63, v0')
    A('v_lshrrev_b32 v254, 6, v0')
    A('s_nop 0')
    A('v_readfirstlane_b32 s3, v254')
    LANE = 255
    A(f'v_lshrrev_b32 v253, 4, v{LANE}')
    A(f'v_and_b32 v252, 15, v{LANE}')
    G, C16 = 253, 252
    A(f'v_lshlrev_b32 v251, 8, v{G}')
    A(f'v_lshlrev_b32 v250, 2, v{G}')
    for i in range(4):
        A(f'v_or_b32 v249, {i}, v250')
        A(f'v_xor_b32 v249, v249, v{C16}')
        A(f'v_lshl_add_u32 v{240+i}, v249, 4, v251')
    for i in range(4):
        A(f'v_or_b32 v249, {4*i}, v{G}')
        A(f'v_xor_b32 v249, v249, v{C16}')
        A(f'v_lshl_add_u32 v{244+i}, v249, 4, v251')
    A('s_lshl_b32 s26, s2, 2')
    A('s_add_u32 s27, s26, s3')
    A('s_waitcnt lgkmcnt(0)')
    def srd(d, p, n):
        A(f's_mov_b32 s{d}, s{p}'); A(f's_mov_b32 s{d+1}, s{p+1}')
        A(f's_mov_b32 s{d+2}, {n}'); A(f's_mov_b32 s{d+3}, 0x20000')
    srd(28, 6, 256000); srd(32, 12, 32768)
    A('s_lshl_b32 s52, s3, 13')
    A(f's_add_u32 s53, s52, {WOFF}')
    A('s_mov_b32 m0, s53')
    srd(36, 24, 2048000);
    for m in range(8):
        if m == 4:
            A('s_add_u32 s52, s52, 4096'); A('s_add_u32 m0, m0, 4096'); A('s_nop 0')
        A(f'buffer_load_dwordx4 v{240+(m&3)}, s[32:35], s52 offen offset:{(m&3)*1024} lds')
    srd(40, 14, 256); srd(44, 16, 256); srd(48, 18, 256)
    A(f'v_lshrrev_b32 v249, 2, v{C16}')
    A(f'v_lshlrev_b32 v248, 4, v249')
    A('s_lshl_b32 s54, s27, 8')
    TQ = 208
    for ks in range(4):
        A(f'buffer_load_dwordx4 v[{TQ+4*ks}:{TQ+4*ks+3}], v248, s[28:31], s54 offen offset:{ks*64}')
    A(f'v_lshlrev_b32 v247+0, 3, v{G}'.replace('v247+0', 'v239'))
    BR, HR = 144, 176
    for at in range(8):
        A(f'buffer_load_dwordx2 v[{BR+2*at}:{BR+2*at+1}], v239, s[40:43], 0 offen offset:{32*at}')
    for at in range(8):
        A(f'buffer_load_dwordx2 v[{HR+2*at}:{HR+2*at+1}], v239, s[44:47], 0 offen offset:{32*at}')
    A(f'v_lshlrev_b32 v238, 4, v{G}')
    for ks in range(4):
        A(f'buffer_load_dwordx4 a[{32+4*ks}:{32+4*ks+3}], v238, s[44:47], 0 offen offset:{64*ks}')
    A(f'v_lshlrev_b32 v237, 2, v{LANE}')
    A('buffer_load_dword v236, v237, s[28:31], s54 offen')
    A('buffer_load_dword v235, v237, s[48:51], 0 offen')
    n_small = 4 + 16 + 4 + 2
    A('s_lshl_b32 s55, s26, 8')
    A('s_lshl_b32 s56, s3, 12')
    A('s_add_u32 s55, s55, s56')
    A('s_mov_b32 m0, s56')
    ndma = 0
    for kk in range(8):
        for i in range(4):
            last = (kk == 7 and i >= 2)
            A(f's_sub_u32 s58, s55, 256000')
            A(f's_min_u32 s57, s55, s58')
            inc = 1024 if i < 3 else 13312
            A(f's_add_u32 s55, s55, {inc}')
            if last:
                A('s_cmp_eq_u32 s3, 3')
                A(f's_cbranch_scc1 L1_skipdma_{i}')
            A(f'buffer_load_dwordx4 v{244+i}, s[28:31], s57 offen lds')
            if last: A.label(f'L1_skipdma_{i}')
            A(f's_add_u32 m0, m0, {inc}')
            ndma += 1
    A(f'v_cmp_eq_u32 vcc, v{G}, v249')
    A(f'v_and_b32 v234, 1, v{LANE}')
    A('v_cmp_eq_u32 s[60:61], 1, v234')
    A('v_mov_b32 v233, 0xffff')
    A('v_mov_b32 v232, 0xffff0000')
    A('v_cndmask_b32 v234, v233, v232, s[60:61]')
    A('v_cndmask_b32 v234, 0, v234, vcc')
    A(f'v_and_b32 v233, 2, v{LANE}')
    A('v_cmp_eq_u32 vcc, 0, v233')
    A('s_nop 1')
    A('v_cndmask_b32 v232, 0, v234, vcc')
    A('v_cndmask_b32 v233, v234, 0, vcc')
    M0r, M1r = 232, 233
    TRA = 48
    TRA = 192
    A(f'v_bfe_u32 v231, v{LANE}, 2, 2')
    A(f'v_lshlrev_b32 v230, 3, v{G}')
    A('v_add_u32 v230, v230, v231')
    A('v_lshlrev_b32 v230, 8, v230')
    A(f'v_and_b32 v229, 1, v{LANE}')
    A('v_lshl_add_u32 v230, v229, 3, v230')
    A(f'v_add_u32 v230, {WOFF}, v230')
    A(f'v_bfe_u32 v229, v{LANE}, 1, 1')
    A('v_lshlrev_b32 v228, 2, v231')
    for half in range(2):
        A(f'v_lshlrev_b32 v227, 1, v{G}')
        A(f'v_add_u32 v227, {half}, v227')
        A('v_and_b32 v227, 3, v227')
        A('v_or_b32 v227, v227, v228')
        A('v_xor_b32 v227, v227, v229')
        A('v_lshl_add_u32 v227, v227, 4, v230')
        for at in range(8):
            A(f'v_xor_b32 v{TRA+half*8+at}, {at<<5}, v227')
    A(f'v_and_b32 v227, 3, v{C16}')
    A('v_lshlrev_b32 v227, 2, v227')
    A(f'v_lshrrev_b32 v226, 2, v{C16}')
    A('v_or_b32 v227, v227, v226')
    A(f'v_xor_b32 v227, v227, v{G}')
    A(f'v_lshlrev_b32 v226, 8, v{C16}')
    A('v_lshl_add_u32 v226, v227, 4, v226')
    A('s_lshl_b32 s59, s3, 13')
    A(f's_add_u32 s59, s59, {WOFF}')
    A('v_add_u32 v226, s59, v226')
    for ks in range(4):
        A(f'v_xor_b32 v{224 if ks==0 else (225 if ks==1 else (231 if ks==2 else 230))}, {ks<<6}, v226')
    WHA = [224, 225, 231, 230]
    A('s_waitcnt vmcnt(30)')
    A('s_barrier')
    for rt in range(2):
        for ks in range(4):
            A(f'ds_read_b128 a[{48+(rt*4+ks)*4}:{48+(rt*4+ks)*4+3}], v{WHA[ks]} offset:{rt*4096}')
    AD = [128, 134, 160, 166]
    for ks in range(4):
        a = AD[ks]; q = TQ + 4*ks
        A(f'v_and_b32 v{a}, v{q}, v{M0r}')
        A(f'v_and_b32 v{a+1}, v{q+1}, v{M1r}')
        A(f'v_mov_b32 v{a+2}, 0')
        A(f'v_mov_b32 v{a+3}, 0')
        A(f'v_and_b32 v{a+4}, v{q+2}, v{M0r}')
        A(f'v_and_b32 v{a+5}, v{q+3}, v{M1r}')
    A('s_waitcnt lgkmcnt(0)')
    for rt in range(2):
        for ks in range(4):
            cin = '0' if ks == 0 else vr(208+4*rt, 4)
            A(f'v_mfma_f32_16x16x32_bf16 {vr(208+4*rt,4)}, {ar(48+(rt*4+ks)*4,4)}, {ar(32+4*ks,4)}, {cin}')
    steps = [(ks, at) for ks in range(4) for at in range(8)]
    NB = 6
    def trread(si):
        ks, at = steps[si]; b = 80 + (si % 8) * 4
        A(f'ds_read_b64_tr_b16 a[{b}:{b+1}], v{TRA+at} offset:{ks*8192}')
        A(f'ds_read_b64_tr_b16 a[{b+2}:{b+3}], v{TRA+8+at} offset:{ks*8192+1024}')
    for si in range(NB): trread(si)
    A('s_lshl_b32 s59, s3, 7')
    A(f's_add_u32 s59, s59, {MISC}')
    A(f'v_lshlrev_b32 v226, 4, v{G}')
    A('v_add_u32 v226, s59, v226')
    A('s_nop 4')
    Dbuf = [216, 140, 172]
    Dbuf = [216, 240]
    A(f'ds_write_b128 v226, v[208:211]')
    A(f'ds_write_b128 v226, v[212:215] offset:64')
    nout = 2
    A('s_waitcnt lgkmcnt(0)')
    issued = NB
    def cvt(si):
        ks, at = steps[si]; d = Dbuf[si % 2]; a = (at*4+ks)*4
        A(f'v_cvt_pk_bf16_f32 v{a}, v{d}, v{d+1}')
        A(f'v_cvt_pk_bf16_f32 v{a+1}, v{d+2}, v{d+3}')
        A(f'v_cvt_pk_bf16_f32 v{a+2}, v{d+4}, v{d+5}')
        A(f'v_cvt_pk_bf16_f32 v{a+3}, v{d+6}, v{d+7}')
    for si in range(32):
        ks, at = steps[si]; b = 80 + (si % 8) * 4; d = Dbuf[si % 2]
        if si >= NB:
            A(f's_waitcnt lgkmcnt({min(15, 2*(issued-si-1))})')
        A(f'v_mfma_f32_16x16x32_bf16 {vr(d,4)}, {vr(AD[ks],4)}, {ar(b,4)}, 0')
        A(f'v_mfma_f32_16x16x32_bf16 {vr(d+4,4)}, {vr(AD[ks]+2,4)}, {ar(b,4)}, 0')
        did = False
        if issued < 32:
            trread(issued); issued += 1; did = True
        if si >= 1:
            if si == 1: A('s_nop 3')
            elif not did: A('s_nop 2')
            cvt(si-1)
    A('s_nop 7')
    cvt(31)
    for i in range(8): A(f'v_mov_b32 v{240+i}, v{BR+8+i}')
    for at in range(8):
        src = BR + 2*at if at < 4 else 240 + 2*(at-4)
        d = 128 + 4*at
        A(f'v_lshlrev_b32 v{d}, 16, v{src}');      A(f'v_and_b32 v{d+1}, 0xffff0000, v{src}')
        A(f'v_lshlrev_b32 v{d+2}, 16, v{src+1}');  A(f'v_and_b32 v{d+3}, 0xffff0000, v{src+1}')
    for i in range(8): A(f'v_mov_b32 v{240+i}, v{HR+8+i}')
    for at in range(8):
        src = HR + 2*at if at < 4 else 240 + 2*(at-4)
        d = 160 + 4*at
        A(f'v_lshlrev_b32 v{d}, 16, v{src}');      A(f'v_and_b32 v{d+1}, 0xffff0000, v{src}')
        A(f'v_lshlrev_b32 v{d+2}, 16, v{src+1}');  A(f'v_and_b32 v{d+3}, 0xffff0000, v{src+1}')
    C0 = 216
    A(f'v_mov_b32 v{C0}, 0')
    for i in range(32):
        A(f'v_fma_f32 v{C0}, -|v{128+i}|, v{160+i}, v{C0}')
    A('s_barrier')
    A(f'v_lshlrev_b32 v226, 3, v{LANE}')
    A(f'ds_read_b64 v[228:229], v226 offset:{MISC & 0xffff}' if MISC < 65536 else f'v_add_u32 v226, {MISC}, v226')
    if MISC >= 65536: A('ds_read_b64 v[228:229], v226')
    A('v_lshlrev_b32 v224, 16, v236'); A('v_and_b32 v225, 0xffff0000, v236')
    A('v_lshlrev_b32 v230, 16, v235'); A('v_and_b32 v231, 0xffff0000, v235')
    A('v_mul_f32 v230, v230, v224'); A('v_mul_f32 v231, v231, v225')
    A('v_cvt_pk_bf16_f32 v230, v230, v231')
    A('s_waitcnt lgkmcnt(0)')
    A('v_mul_f32 v228, v228, v224'); A('v_mul_f32 v229, v229, v225')
    A('v_cvt_pk_bf16_f32 v228, v228, v229')
    A('s_mul_i32 s59, s3, 544')
    A(f's_add_u32 s59, s59, {AUXA}')
    A(f'v_lshlrev_b32 v226, 2, v{LANE}')
    A('v_add_u32 v226, s59, v226')
    A('ds_write_b32 v226, v228')
    A('ds_write_b32 v226, v230 offset:272')
    A('s_waitcnt vmcnt(0) lgkmcnt(0)')
    A('s_barrier')
    A(f'v_and_b32 v226, 7, v{LANE}')
    A('v_mul_u32_u24 v226, 272, v226')
    A(f'v_lshl_add_u32 v226, v{G}, 4, v226')
    A(f'v_add_u32 v226, {AUXA}, v226')
    for ks in range(4):
        A(f'ds_read_b128 a[{32+4*ks}:{32+4*ks+3}], v226 offset:{64*ks}')
    VB = 212
    for ks in range(4):
        A(f'v_or_b32 v226, {4*ks}, v{G}')
        A(f'v_xor_b32 v226, v226, v{C16}')
        A(f'v_lshlrev_b32 v225, 8, v{C16}')
        A(f'v_lshl_add_u32 v{VB+ks}, v226, 4, v225')
    A('s_lshl_b32 s59, s3, 15')
    for ks in range(4):
        A(f'v_add_u32 v{240+ks}, s59, v{VB+ks}')
    A(f'v_and_b32 v226, 1, v{G}')
    A('v_lshlrev_b32 v226, 13, v226')
    A(f'v_lshl_add_u32 v226, v{C16}, 3, v226')
    A('s_lshl_b32 s59, s3, 10')
    A(f's_add_u32 s59, s59, {AUX}')
    A('v_add_u32 v226, s59, v226')
    A('s_waitcnt lgkmcnt(0)')
    for i in range(8):
        for ks in range(4):
            b = 48 + (i*4+ks)*4
            A(f'ds_read_b128 a[{b}:{b+3}], v{240+ks} offset:{i*4096}')
        if i in (1, 3, 5): A('s_waitcnt lgkmcnt(4)')
    A('s_waitcnt lgkmcnt(0)')
    DT = [192, 196, 200, 204, 228, 232, 236, 244]
    for i in range(8):
        for ks in range(4):
            b = 48 + (i*4+ks)*4
            cin = '0' if ks == 0 else vr(DT[i], 4)
            A(f'v_mfma_f32_16x16x32_bf16 {vr(DT[i],4)}, {ar(32+4*ks,4)}, {ar(b,4)}, {cin}')
    for ks in range(4):
        A(f'ds_read_b128 a[{4*ks}:{4*ks+3}], v{VB+ks}')
    A('s_nop 4')
    for i in range(8):
        A(f'ds_write_b64 v226, v[{DT[i]}:{DT[i]+1}] offset:{i*128}')
        A(f'ds_write_b64 v226, v[{DT[i]+2}:{DT[i]+3}] offset:{i*128+4096}')
    A('s_waitcnt lgkmcnt(0)')
    A('s_barrier')
    ACC = 208
    VX, VY, VE = 217, 218, 219
    VAUX, VST = 220, 221
    LS = 222
    A(f's_lshl_b32 s59, s3, 12')
    A(f's_add_u32 s59, s59, {AUX - 512}')
    A(f'v_lshlrev_b32 v{VAUX}, 3, v{LANE}')
    A(f'v_add_u32 v{VAUX}, s59, v{VAUX}')
    A('s_lshl_b32 s59, s27, 9')
    A('s_sub_u32 s59, s59, s3')
    A('s_lshl_b32 s59, s59, 2')
    A(f'v_lshlrev_b32 v{VST}, 2, v{LANE}')
    A(f'v_add_u32 v{VST}, s59, v{VST}')
    A(f's_mov_b32 s60, {f2u(0.5*LOG2E)}')
    A('s_mov_b32 s61, 0')
    A('s_mov_b32 s62, -256')
    def consume(c_prev, r):
        ct, at = divmod(c_prev, 8)
        cb = 192 + 4*(c_prev % 4)
        src2 = f'v{C0}' if (at == 0 and r == 0) else f'v{ACC+ct}'
        return f'v_fma_f32 v{ACC+ct}, |v{cb+r}|, v{160+4*at+r}, {src2}'
    def final_tail():
        pass
    A('.p2align 6')
    A.label('L1_loop')
    for c in range(32):
        ct, at = divmod(c, 8)
        cb = 192 + 4*(c % 4)
        bb = (ct & 1) * 16
        cp = (c - 2) % 32
        fill = [[], [], [], []]
        f = [consume(cp, r) for r in range(4)]
        extra = []
        if 1 <= at <= 4:
            ks2 = at - 1
            nb = ((ct+1) & 1) * 16
            fill[0] = [f[0], f[1]]
            fill[1] = [f'ds_read_b128 a[{nb+4*ks2}:{nb+4*ks2+3}], v{VB+ks2} offset:{(ct+1)*4096}']
            fill[2] = [f[2]]; fill[3] = [f[3]]
        else:
            fill = [[f[0]], [f[1]], [f[2]], [f[3]]]
        if c == 26:
            fill[1].append(f'v_permlane32_swap_b32 v{ACC+0}, v{ACC+2}')
            fill[3].append(f'v_add_f32 v{VX}, v{ACC+0}, v{ACC+2}')
        if c == 29:
            fill[0].append(f'v_add_u32 v{VAUX}, 512, v{VAUX}')
            fill[2] = [f'ds_read_b64 v[{LS}:{LS+1}], v{VAUX}']
            fill[3] = [f[2], f[3]]
        if c == 30:
            for ks in range(2): fill[ks].append(f'v_add_u32 v{VB+ks}, 16384, v{VB+ks}')
            for ks in range(2,4): fill[ks].append(f'v_add_u32 v{VB+ks}, 16384, v{VB+ks}')
        if c == 2:
            fill[1].append(f'v_permlane32_swap_b32 v{ACC+1}, v{ACC+3}')
            fill[3].append(f'v_add_f32 v{VY}, v{ACC+1}, v{ACC+3}')
        if c == 5:
            fill[0].append(f'v_permlane16_swap_b32 v{VX}, v{VY}')
            fill[2].append(f'v_add_f32 v{VE}, v{VX}, v{VY}')
            fill[3].append(f'v_add_f32 v{VE}, v{VE}, v{LS}')
        if c == 6:
            fill[0].append(f'v_mul_f32 v{VE}, s60, v{VE}')
            fill[2].append(f'v_cvt_pk_bf16_f32 v{VE}, v{VE}, v{LS+1}')
        if c == 7:
            fill[0] += ['s_cmp_eq_u32 s61, 0', 's_cbranch_scc1 L1_nostore',
                        f'buffer_store_dword v{VE}, v{VST}, s[36:39], s62 offen', 'LABEL L1_nostore']
            fill[1].append('s_add_u32 s62, s62, 256')
        if at == 0:
            A('s_waitcnt lgkmcnt(0)')
        for ks in range(4):
            cin = vr(128+4*at, 4) if ks == 0 else vr(cb, 4)
            A(f'v_mfma_f32_16x16x32_bf16 {vr(cb,4)}, {vr((at*4+ks)*4,4)}, {ar(bb+4*ks,4)}, {cin}')
            for x in fill[ks]:
                if x.startswith('LABEL'): A.label(x.split()[1])
                else: A(x)
    A('s_add_u32 s61, s61, 1')
    A('s_cmp_lt_u32 s61, 8')
    A('s_cbranch_scc1 L1_loop')
    A('s_nop 7')
    for cp in (30, 31):
        for r in range(4): A(consume(cp, r))
    A('s_nop 1')
    A(f'v_permlane32_swap_b32 v{ACC+1}, v{ACC+3}')
    A('s_nop 1')
    A(f'v_add_f32 v{VY}, v{ACC+1}, v{ACC+3}')
    A('s_nop 1')
    A(f'v_permlane16_swap_b32 v{VX}, v{VY}')
    A('s_waitcnt lgkmcnt(0)')
    A(f'v_add_f32 v{VE}, v{VX}, v{VY}')
    A(f'v_add_f32 v{VE}, v{VE}, v{LS}')
    A(f'v_mul_f32 v{VE}, s60, v{VE}')
    A(f'v_cvt_pk_bf16_f32 v{VE}, v{VE}, v{LS+1}')
    A(f'buffer_store_dword v{VE}, v{VST}, s[36:39], s62 offen')
    A.label('L1_end')
    A('s_endpgm')

def k2(A):
    name = 'afm_softmax_kernel'
    A.raw(f'.globl {name}\n.p2align 8\n.type {name},@function')
    A.label(name)
    A('s_cmp_ge_u32 s2, 1024')
    A('s_cbranch_scc1 L2_end')
    A('s_load_dwordx2 s[4:5], s[0:1], 0')
    A('s_load_dwordx2 s[6:7], s[0:1], 64')
    A('s_load_dwordx2 s[8:9], s[0:1], 80')
    A('v_lshrrev_b32 v1, 6, v0')
    A('v_and_b32 v2, 63, v0')
    A('v_readfirstlane_b32 s3, v1')
    A('s_lshl_b32 s10, s2, 2')
    A('s_add_u32 s10, s10, s3')
    A('v_and_b32 v3, 31, v2')
    A('v_lshrrev_b32 v4, 5, v2')
    A('v_lshlrev_b32 v5, 2, v3')
    A('s_mul_i32 s11, s10, 104')
    A('s_waitcnt lgkmcnt(0)')
    A('s_mov_b32 s12, s4'); A('s_mov_b32 s13, s5'); A('s_mov_b32 s14, 425984'); A('s_mov_b32 s15, 0x20000')
    A('buffer_load_dword v6, v5, s[12:15], s11 offen')
    A('s_mov_b32 s16, s8'); A('s_or_b32 s17, s9, 0x40000'); A('s_mov_b32 s18, 512000'); A('s_mov_b32 s19, 0x20000')
    A('s_mov_b32 s20, s6'); A('s_mov_b32 s21, s7'); A('s_mov_b32 s22, 8192'); A('s_mov_b32 s23, 0x20000')
    A('v_lshlrev_b32 v7, 2, v4')
    A('v_mov_b32 v8, 501'); A('v_mov_b32 v9, 499')
    E = 16
    I = 32
    for r in range(13): A(f'v_mov_b32 v{E+r}, 0xff80')
    A('s_waitcnt vmcnt(0)')
    for r in range(13):
        A(f'ds_bpermute_b32 v{48+r}, v7, v6 offset:{8*r}')
    for r in range(13):
        A(f's_waitcnt lgkmcnt({12-r})')
        vi = 48 + r
        gtlo = (1 << (2*r)) - 1
        gthi = (1 << (2*r+1)) - 1
        vlo = ((1 << 26) - 1) & ~(1 << (2*r))
        vhi = ((1 << 26) - 1) & ~(1 << (2*r+1))
        A(f's_mov_b32 s24, {hex(gtlo)}'); A(f's_mov_b32 s25, {hex(gthi)}')
        A(f'v_sub_u32 v10, v6, v{vi}')
        A(f'v_add_u32 v11, 1000, v10')
        A(f'v_min_u32 v10, v10, v11')
        A(f'v_subb_co_u32 v11, s[26:27], v10, 0, s[24:25]')
        A(f'v_cndmask_b32 v12, v8, v9, s[24:25]')
        A(f'v_lshl_add_u32 v{I+r}, v{vi}, 9, v10')
        A(f'v_cmp_lt_u32 s[{28+2*r}:{29+2*r}], v11, v12')
        A(f's_and_b32 s{28+2*r}, s{28+2*r}, {hex(vlo)}')
        A(f's_and_b32 s{29+2*r}, s{29+2*r}, {hex(vhi)}')
    for r in range(13):
        A(f's_mov_b64 exec, s[{28+2*r}:{29+2*r}]')
        A(f'buffer_load_dword v{E+r}, v{I+r}, s[16:19], 0 idxen')
    A('s_mov_b64 exec, -1')
    A('s_waitcnt vmcnt(0)')
    EE, SS = 32, 48
    for r in range(13):
        A(f'v_lshlrev_b32 v{EE+r}, 16, v{E+r}')
        A(f'v_and_b32 v{SS+r}, 0xffff0000, v{E+r}')
    A(f'v_max3_f32 v10, v{EE}, v{EE+1}, v{EE+2}')
    for r in range(3, 13, 2):
        A(f'v_max3_f32 v10, v10, v{EE+r}, v{EE+r+1}')
    def reduce(op, v):
        for sh in (1, 2, 4, 8):
            A('s_nop 1')
            A(f'{op}_dpp v{v}, v{v}, v{v} row_shr:{sh} row_mask:0xf bank_mask:0xf')
        A('s_nop 1')
        A(f'{op}_dpp v{v}, v{v}, v{v} row_bcast:15 row_mask:0xa bank_mask:0xf')
        A('s_nop 1')
        A(f'{op}_dpp v{v}, v{v}, v{v} row_bcast:31 row_mask:0xc bank_mask:0xf')
    reduce('v_max_f32', 10)
    A('s_nop 1')
    A('v_readlane_b32 s24, v10, 63')
    A('s_nop 3')
    A('v_mov_b32 v11, 0'); A('v_mov_b32 v12, 0')
    for r in range(13):
        A(f'v_subrev_f32 v{EE+r}, s24, v{EE+r}')
    for r in range(13):
        A(f'v_exp_f32 v{EE+r}, v{EE+r}')
    A('s_nop 0')
    for r in range(13):
        A(f'v_add_f32 v11, v11, v{EE+r}')
        A(f'v_fma_f32 v12, v{EE+r}, v{SS+r}, v12')
    reduce('v_add_f32', 11)
    reduce('v_add_f32', 12)
    A('s_nop 1')
    A('v_rcp_f32 v11, v11')
    A('s_nop 0')
    A('v_mul_f32 v12, v12, v11')
    A('v_cvt_pk_bf16_f32 v12, v12, v12')
    A('s_lshl_b32 s24, s10, 1')
    A('v_mov_b32 v13, 0')
    A('s_mov_b32 exec_lo, 0'); A('s_mov_b32 exec_hi, 0x80000000')
    A('buffer_store_short v12, v13, s[20:23], s24 offen')
    A.label('L2_end')
    A('s_endpgm')

def kd(A, name, vgpr, acc, sgpr=102):
    A.raw(f'''.amdhsa_kernel {name}
  .amdhsa_next_free_vgpr {vgpr}
  .amdhsa_next_free_sgpr {sgpr}
  .amdhsa_accum_offset {acc}
  .amdhsa_group_segment_fixed_size 0
  .amdhsa_kernarg_size 88
  .amdhsa_user_sgpr_count 2
  .amdhsa_user_sgpr_kernarg_segment_ptr 1
  .amdhsa_system_sgpr_workgroup_id_x 1
.end_amdhsa_kernel''')

def main(out):
    A = Asm()
    A.raw(HDR.rstrip())
    A.raw(f'; @launch kernel=afm_table_kernel grid=(250,1,1) block=(256,1,1) lds={LDS_K1}')
    A.raw('; @launch kernel=afm_softmax_kernel grid=(1024,1,1) block=(256,1,1) lds=0')
    A.raw('.amdgcn_target "amdgcn-amd-amdhsa--gfx950"')
    A.raw('.text')
    k1(A)
    k2(A)
    A.raw('.section .rodata,"a"')
    A.raw('.p2align 6')
    kd(A, 'afm_table_kernel', 512, 256)
    A.raw('.p2align 6')
    kd(A, 'afm_softmax_kernel', 64, 64)
    open(out, 'w').write(A.text())

if __name__ == '__main__':
    main(sys.argv[1] if len(sys.argv) > 1 else 'cdna_kernels/%s.s' % KN)
```

```python
import sys

KN = 'standalone__factorization_afm__recsys'
HDR = open('cdna_kernels/%s.s.ref' % KN).read().split('; Override')[0]

STAMP = False
DBG = False
class Asm:
    def __init__(self): self.L = []
    def __call__(self, s): self.L.append('  ' + s)
    def label(self, s): self.L.append(s + ':')
    def raw(self, s): self.L.append(s)
    def text(self): return '\n'.join(self.L) + '\n'

def vr(a, n=1): return f'v{a}' if n == 1 else f'v[{a}:{a+n-1}]'
def ar(a, n=1): return f'a{a}' if n == 1 else f'a[{a}:{a+n-1}]'
def sr(a, n=1): return f's{a}' if n == 1 else f's[{a}:{a+n-1}]'

T_ROWS = 504
MISC = T_ROWS * 256
WOFF = 131072
AUXA = WOFF
AUX = WOFF + 4096
LDS_K1 = 163840
LOG2E = 1.4426950408889634
import struct
def f2u(f): return struct.unpack('<I', struct.pack('<f', f))[0]

def stamp(A, slot):
    if STAMP or DBG:
        A(f's_memrealtime s[{64+2*slot}:{65+2*slot}]')

def stamp_store(A, nslots, base_off, wave_sgpr_expr, ws_lo, tmpv=200):
    if not STAMP: return
    A('s_waitcnt lgkmcnt(0)')
    A(f's_mov_b64 exec, 1')
    A(f's_lshl_b32 s99, s98, 6')
    A(f's_add_u32 s99, s99, {base_off}')
    A(f's_add_u32 s96, s{ws_lo}, s99')
    A(f's_addc_u32 s97, s{ws_lo+1}, 0')
    A(f'v_mov_b32 v{tmpv}, 0')
    for i in range(nslots):
        A(f'v_mov_b32 v{tmpv+1}, s{64+2*i}')
        A(f'global_store_dword v{tmpv}, v{tmpv+1}, s[96:97] offset:{4*i}')
    A('s_waitcnt vmcnt(0)')

def k1(A):
    name = 'afm_table_kernel'
    A.raw(f'.globl {name}\n.p2align 8\n.type {name},@function')
    A.label(name)
    A('s_cmp_ge_u32 s2, 250')
    A('s_cbranch_scc1 L1_end')
    stamp(A, 0)
    A('s_load_dwordx16 s[4:19], s[0:1], 0')
    A('s_load_dwordx2 s[24:25], s[0:1], 80')
    A('v_and_b32 v255, 63, v0')
    A('v_lshrrev_b32 v254, 6, v0')
    A('s_nop 0')
    A('v_readfirstlane_b32 s3, v254')
    LANE = 255
    A(f'v_lshrrev_b32 v253, 4, v{LANE}')
    A(f'v_and_b32 v252, 15, v{LANE}')
    G, C16 = 253, 252
    A(f'v_lshlrev_b32 v251, 8, v{G}')
    A(f'v_lshlrev_b32 v250, 2, v{G}')
    for i in range(4):
        A(f'v_or_b32 v249, {i}, v250')
        A(f'v_xor_b32 v249, v249, v{C16}')
        A(f'v_lshl_add_u32 v{240+i}, v249, 4, v251')
    for i in range(4):
        A(f'v_or_b32 v249, {4*i}, v{G}')
        A(f'v_xor_b32 v249, v249, v{C16}')
        A(f'v_lshl_add_u32 v{244+i}, v249, 4, v251')
    A('s_lshl_b32 s26, s2, 2')
    A('s_add_u32 s27, s26, s3')
    A('s_waitcnt lgkmcnt(0)')
    def srd(d, p, n):
        A(f's_mov_b32 s{d}, s{p}'); A(f's_mov_b32 s{d+1}, s{p+1}')
        A(f's_mov_b32 s{d+2}, {n}'); A(f's_mov_b32 s{d+3}, 0x20000')
    srd(28, 6, 256000); srd(32, 12, 32768)
    A('s_lshl_b32 s52, s3, 13')
    A(f's_add_u32 s53, s52, {WOFF}')
    A('s_mov_b32 m0, s53')
    srd(36, 24, 2048000);
    for m in range(8):
        if m == 4:
            A('s_add_u32 s52, s52, 4096'); A('s_add_u32 m0, m0, 4096'); A('s_nop 0')
        A(f'buffer_load_dwordx4 v{240+(m&3)}, s[32:35], s52 offen offset:{(m&3)*1024} lds')
    srd(40, 14, 256); srd(44, 16, 256); srd(48, 18, 256)
    A(f'v_lshrrev_b32 v249, 2, v{C16}')
    A(f'v_lshlrev_b32 v248, 4, v249')
    A('s_lshl_b32 s54, s27, 8')
    TQ = 208
    for ks in range(4):
        A(f'buffer_load_dwordx4 v[{TQ+4*ks}:{TQ+4*ks+3}], v248, s[28:31], s54 offen offset:{ks*64}')
    A(f'v_lshlrev_b32 v247+0, 3, v{G}'.replace('v247+0', 'v239'))
    BR, HR = 144, 176
    for at in range(8):
        A(f'buffer_load_dwordx2 v[{BR+2*at}:{BR+2*at+1}], v239, s[40:43], 0 offen offset:{32*at}')
    for at in range(8):
        A(f'buffer_load_dwordx2 v[{HR+2*at}:{HR+2*at+1}], v239, s[44:47], 0 offen offset:{32*at}')
    A(f'v_lshlrev_b32 v238, 4, v{G}')
    for ks in range(4):
        A(f'buffer_load_dwordx4 a[{32+4*ks}:{32+4*ks+3}], v238, s[44:47], 0 offen offset:{64*ks}')
    A(f'v_lshlrev_b32 v237, 2, v{LANE}')
    A('buffer_load_dword v236, v237, s[28:31], s54 offen')
    A('buffer_load_dword v235, v237, s[48:51], 0 offen')
    n_small = 4 + 16 + 4 + 2
    A('s_lshl_b32 s55, s26, 8')
    A('s_lshl_b32 s56, s3, 12')
    A('s_add_u32 s55, s55, s56')
    A('s_mov_b32 m0, s56')
    ndma = 0
    for kk in range(8):
        for i in range(4):
            last = (kk == 7 and i >= 2)
            A(f's_sub_u32 s58, s55, 256000')
            A(f's_min_u32 s57, s55, s58')
            inc = 1024 if i < 3 else 13312
            A(f's_add_u32 s55, s55, {inc}')
            if last:
                A('s_cmp_eq_u32 s3, 3')
                A(f's_cbranch_scc1 L1_skipdma_{i}')
            A(f'buffer_load_dwordx4 v{244+i}, s[28:31], s57 offen lds')
            if last: A.label(f'L1_skipdma_{i}')
            A(f's_add_u32 m0, m0, {inc}')
            ndma += 1
    A(f'v_cmp_eq_u32 vcc, v{G}, v249')
    A(f'v_and_b32 v234, 1, v{LANE}')
    A('v_cmp_eq_u32 s[60:61], 1, v234')
    A('v_mov_b32 v233, 0xffff')
    A('v_mov_b32 v232, 0xffff0000')
    A('v_cndmask_b32 v234, v233, v232, s[60:61]')
    A('v_cndmask_b32 v234, 0, v234, vcc')
    A(f'v_and_b32 v233, 2, v{LANE}')
    A('v_cmp_eq_u32 vcc, 0, v233')
    A('s_nop 1')
    A('v_cndmask_b32 v232, 0, v234, vcc')
    A('v_cndmask_b32 v233, v234, 0, vcc')
    M0r, M1r = 232, 233
    TRA = 48
    TRA = 192
    A(f'v_bfe_u32 v231, v{LANE}, 2, 2')
    A(f'v_lshlrev_b32 v230, 3, v{G}')
    A('v_add_u32 v230, v230, v231')
    A('v_lshlrev_b32 v230, 8, v230')
    A(f'v_and_b32 v229, 1, v{LANE}')
    A('v_lshl_add_u32 v230, v229, 3, v230')
    A(f'v_add_u32 v230, {WOFF}, v230')
    A(f'v_bfe_u32 v229, v{LANE}, 1, 1')
    A('v_lshlrev_b32 v228, 2, v231')
    for half in range(2):
        A(f'v_lshlrev_b32 v227, 1, v{G}')
        A(f'v_add_u32 v227, {half}, v227')
        A('v_and_b32 v227, 3, v227')
        A('v_or_b32 v227, v227, v228')
        A('v_xor_b32 v227, v227, v229')
        A('v_lshl_add_u32 v227, v227, 4, v230')
        for at in range(8):
            A(f'v_xor_b32 v{TRA+half*8+at}, {at<<5}, v227')
    A(f'v_and_b32 v227, 3, v{C16}')
    A('v_lshlrev_b32 v227, 2, v227')
    A(f'v_lshrrev_b32 v226, 2, v{C16}')
    A('v_or_b32 v227, v227, v226')
    A(f'v_xor_b32 v227, v227, v{G}')
    A(f'v_lshlrev_b32 v226, 8, v{C16}')
    A('v_lshl_add_u32 v226, v227, 4, v226')
    A('s_lshl_b32 s59, s3, 13')
    A(f's_add_u32 s59, s59, {WOFF}')
    A('v_add_u32 v226, s59, v226')
    for ks in range(4):
        A(f'v_xor_b32 v{224 if ks==0 else (225 if ks==1 else (231 if ks==2 else 230))}, {ks<<6}, v226')
    WHA = [224, 225, 231, 230]
    stamp(A, 1)
    A('s_waitcnt vmcnt(30)')
    A('s_barrier')
    stamp(A, 2)
    for rt in range(2):
        for ks in range(4):
            A(f'ds_read_b128 a[{48+(rt*4+ks)*4}:{48+(rt*4+ks)*4+3}], v{WHA[ks]} offset:{rt*4096}')
    AD = [128, 134, 160, 166]
    for ks in range(4):
        a = AD[ks]; q = TQ + 4*ks
        A(f'v_and_b32 v{a}, v{q}, v{M0r}')
        A(f'v_and_b32 v{a+1}, v{q+1}, v{M1r}')
        A(f'v_mov_b32 v{a+2}, 0')
        A(f'v_mov_b32 v{a+3}, 0')
        A(f'v_and_b32 v{a+4}, v{q+2}, v{M0r}')
        A(f'v_and_b32 v{a+5}, v{q+3}, v{M1r}')
    A('s_waitcnt lgkmcnt(0)')
    for rt in range(2):
        for ks in range(4):
            cin = '0' if ks == 0 else vr(208+4*rt, 4)
            A(f'v_mfma_f32_16x16x32_bf16 {vr(208+4*rt,4)}, {ar(48+(rt*4+ks)*4,4)}, {ar(32+4*ks,4)}, {cin}')
    steps = [(ks, at) for ks in range(4) for at in range(8)]
    NB = 6
    def trread(si):
        ks, at = steps[si]; b = 80 + (si % 8) * 4
        A(f'ds_read_b64_tr_b16 a[{b}:{b+1}], v{TRA+at} offset:{ks*8192}')
        A(f'ds_read_b64_tr_b16 a[{b+2}:{b+3}], v{TRA+8+at} offset:{ks*8192+1024}')
    for si in range(NB): trread(si)
    A('s_lshl_b32 s59, s3, 7')
    A(f's_add_u32 s59, s59, {MISC}')
    A(f'v_lshlrev_b32 v226, 4, v{G}')
    A('v_add_u32 v226, s59, v226')
    A('s_nop 4')
    Dbuf = [216, 140, 172]
    Dbuf = [216, 240]
    A(f'ds_write_b128 v226, v[208:211]')
    A(f'ds_write_b128 v226, v[212:215] offset:64')
    nout = 2
    A('s_waitcnt lgkmcnt(0)')
    issued = NB
    def cvt(si):
        ks, at = steps[si]; d = Dbuf[si % 2]; a = (at*4+ks)*4
        A(f'v_cvt_pk_bf16_f32 v{a}, v{d}, v{d+1}')
        A(f'v_cvt_pk_bf16_f32 v{a+1}, v{d+2}, v{d+3}')
        A(f'v_cvt_pk_bf16_f32 v{a+2}, v{d+4}, v{d+5}')
        A(f'v_cvt_pk_bf16_f32 v{a+3}, v{d+6}, v{d+7}')
    for si in range(32):
        ks, at = steps[si]; b = 80 + (si % 8) * 4; d = Dbuf[si % 2]
        if si >= NB:
            A(f's_waitcnt lgkmcnt({min(15, 2*(issued-si-1))})')
        A(f'v_mfma_f32_16x16x32_bf16 {vr(d,4)}, {vr(AD[ks],4)}, {ar(b,4)}, 0')
        A(f'v_mfma_f32_16x16x32_bf16 {vr(d+4,4)}, {vr(AD[ks]+2,4)}, {ar(b,4)}, 0')
        did = False
        if issued < 32:
            trread(issued); issued += 1; did = True
        if si >= 1:
            if si == 1: A('s_nop 3')
            elif not did: A('s_nop 2')
            cvt(si-1)
    A('s_nop 7')
    cvt(31)
    for i in range(8): A(f'v_mov_b32 v{240+i}, v{BR+8+i}')
    for at in range(8):
        src = BR + 2*at if at < 4 else 240 + 2*(at-4)
        d = 128 + 4*at
        A(f'v_lshlrev_b32 v{d}, 16, v{src}');      A(f'v_and_b32 v{d+1}, 0xffff0000, v{src}')
        A(f'v_lshlrev_b32 v{d+2}, 16, v{src+1}');  A(f'v_and_b32 v{d+3}, 0xffff0000, v{src+1}')
    for i in range(8): A(f'v_mov_b32 v{240+i}, v{HR+8+i}')
    for at in range(8):
        src = HR + 2*at if at < 4 else 240 + 2*(at-4)
        d = 160 + 4*at
        A(f'v_lshlrev_b32 v{d}, 16, v{src}');      A(f'v_and_b32 v{d+1}, 0xffff0000, v{src}')
        A(f'v_lshlrev_b32 v{d+2}, 16, v{src+1}');  A(f'v_and_b32 v{d+3}, 0xffff0000, v{src+1}')
    C0 = 216
    A(f'v_mov_b32 v{C0}, 0')
    for i in range(32):
        A(f'v_fma_f32 v{C0}, -|v{128+i}|, v{160+i}, v{C0}')
    stamp(A, 3)
    A('s_barrier')
    A(f'v_lshlrev_b32 v226, 3, v{LANE}')
    A(f'ds_read_b64 v[228:229], v226 offset:{MISC & 0xffff}' if MISC < 65536 else f'v_add_u32 v226, {MISC}, v226')
    if MISC >= 65536: A('ds_read_b64 v[228:229], v226')
    A('v_lshlrev_b32 v224, 16, v236'); A('v_and_b32 v225, 0xffff0000, v236')
    A('v_lshlrev_b32 v230, 16, v235'); A('v_and_b32 v231, 0xffff0000, v235')
    A('v_mul_f32 v230, v230, v224'); A('v_mul_f32 v231, v231, v225')
    A('v_cvt_pk_bf16_f32 v230, v230, v231')
    A('s_waitcnt lgkmcnt(0)')
    A('v_mul_f32 v228, v228, v224'); A('v_mul_f32 v229, v229, v225')
    A('v_cvt_pk_bf16_f32 v228, v228, v229')
    A('s_mul_i32 s59, s3, 544')
    A(f's_add_u32 s59, s59, {AUXA}')
    A(f'v_lshlrev_b32 v226, 2, v{LANE}')
    A('v_add_u32 v226, s59, v226')
    A('ds_write_b32 v226, v228')
    A('ds_write_b32 v226, v230 offset:272')
    A('s_waitcnt vmcnt(0) lgkmcnt(0)')
    A('s_barrier')
    A(f'v_and_b32 v226, 7, v{LANE}')
    A('v_mul_u32_u24 v226, 272, v226')
    A(f'v_lshl_add_u32 v226, v{G}, 4, v226')
    A(f'v_add_u32 v226, {AUXA}, v226')
    for ks in range(4):
        A(f'ds_read_b128 a[{32+4*ks}:{32+4*ks+3}], v226 offset:{64*ks}')
    VB = 212
    for ks in range(4):
        A(f'v_or_b32 v226, {4*ks}, v{G}')
        A(f'v_xor_b32 v226, v226, v{C16}')
        A(f'v_lshlrev_b32 v225, 8, v{C16}')
        A(f'v_lshl_add_u32 v{VB+ks}, v226, 4, v225')
    A('s_lshl_b32 s59, s3, 15')
    for ks in range(4):
        A(f'v_add_u32 v{240+ks}, s59, v{VB+ks}')
    A(f'v_and_b32 v226, 1, v{G}')
    A('v_lshlrev_b32 v226, 13, v226')
    A(f'v_lshl_add_u32 v226, v{C16}, 3, v226')
    A('s_lshl_b32 s59, s3, 10')
    A(f's_add_u32 s59, s59, {AUX}')
    A('v_add_u32 v226, s59, v226')
    A('s_waitcnt lgkmcnt(0)')
    for i in range(8):
        for ks in range(4):
            b = 48 + (i*4+ks)*4
            A(f'ds_read_b128 a[{b}:{b+3}], v{240+ks} offset:{i*4096}')
        if i in (1, 3, 5): A('s_waitcnt lgkmcnt(4)')
    A('s_waitcnt lgkmcnt(0)')
    DT = [192, 196, 200, 204, 228, 232, 236, 244]
    for i in range(8):
        for ks in range(4):
            b = 48 + (i*4+ks)*4
            cin = '0' if ks == 0 else vr(DT[i], 4)
            A(f'v_mfma_f32_16x16x32_bf16 {vr(DT[i],4)}, {ar(32+4*ks,4)}, {ar(b,4)}, {cin}')
    for ks in range(4):
        A(f'ds_read_b128 a[{4*ks}:{4*ks+3}], v{VB+ks}')
    A('s_nop 4')
    for i in range(8):
        A(f'ds_write_b64 v226, v[{DT[i]}:{DT[i]+1}] offset:{i*128}')
        A(f'ds_write_b64 v226, v[{DT[i]+2}:{DT[i]+3}] offset:{i*128+4096}')
    A('s_waitcnt lgkmcnt(0)')
    A('s_barrier')
    stamp(A, 4)
    ACC = 208
    VX, VY, VE = 217, 218, 219
    VAUX, VST = 220, 221
    LS = 222
    A(f's_lshl_b32 s59, s3, 12')
    A(f's_add_u32 s59, s59, {AUX - 512}')
    A(f'v_lshlrev_b32 v{VAUX}, 3, v{LANE}')
    A(f'v_add_u32 v{VAUX}, s59, v{VAUX}')
    A('s_lshl_b32 s59, s27, 9')
    A('s_sub_u32 s59, s59, s3')
    A('s_lshl_b32 s59, s59, 2')
    A(f'v_lshlrev_b32 v{VST}, 2, v{LANE}')
    A(f'v_add_u32 v{VST}, s59, v{VST}')
    A(f's_mov_b32 s60, {f2u(0.5*LOG2E)}')
    A('s_mov_b32 s61, 0')
    A('s_mov_b32 s62, -256')
    def consume(c_prev, r):
        ct, at = divmod(c_prev, 8)
        cb = 192 + 4*(c_prev % 4)
        src2 = f'v{C0}' if (at == 0 and r == 0) else f'v{ACC+ct}'
        return f'v_fma_f32 v{ACC+ct}, |v{cb+r}|, v{160+4*at+r}, {src2}'
    def final_tail():
        pass
    A('.p2align 6')
    A.label('L1_loop')
    for c in range(32):
        ct, at = divmod(c, 8)
        cb = 192 + 4*(c % 4)
        bb = (ct & 1) * 16
        cp = (c - 2) % 32
        fill = [[], [], [], []]
        f = [consume(cp, r) for r in range(4)]
        extra = []
        if 1 <= at <= 4:
            ks2 = at - 1
            nb = ((ct+1) & 1) * 16
            fill[0] = [f[0], f[1]]
            fill[1] = [f'ds_read_b128 a[{nb+4*ks2}:{nb+4*ks2+3}], v{VB+ks2} offset:{(ct+1)*4096}']
            fill[2] = [f[2]]; fill[3] = [f[3]]
        else:
            fill = [[f[0]], [f[1]], [f[2]], [f[3]]]
        if c == 26:
            fill[1].append(f'v_permlane32_swap_b32 v{ACC+0}, v{ACC+2}')
            fill[3].append(f'v_add_f32 v{VX}, v{ACC+0}, v{ACC+2}')
        if c == 29:
            fill[0].append(f'v_add_u32 v{VAUX}, 512, v{VAUX}')
            fill[2] = [f'ds_read_b64 v[{LS}:{LS+1}], v{VAUX}']
            fill[3] = [f[2], f[3]]
        if c == 30:
            for ks in range(2): fill[ks].append(f'v_add_u32 v{VB+ks}, 16384, v{VB+ks}')
            for ks in range(2,4): fill[ks].append(f'v_add_u32 v{VB+ks}, 16384, v{VB+ks}')
        if c == 2:
            fill[1].append(f'v_permlane32_swap_b32 v{ACC+1}, v{ACC+3}')
            fill[3].append(f'v_add_f32 v{VY}, v{ACC+1}, v{ACC+3}')
        if c == 5:
            fill[0].append(f'v_permlane16_swap_b32 v{VX}, v{VY}')
            fill[2].append(f'v_add_f32 v{VE}, v{VX}, v{VY}')
            fill[3].append(f'v_add_f32 v{VE}, v{VE}, v{LS}')
        if c == 6:
            fill[0].append(f'v_mul_f32 v{VE}, s60, v{VE}')
            fill[2].append(f'v_cvt_pk_bf16_f32 v{VE}, v{VE}, v{LS+1}')
        if c == 7:
            fill[0] += ['s_cmp_eq_u32 s61, 0', 's_cbranch_scc1 L1_nostore',
                        f'buffer_store_dword v{VE}, v{VST}, s[36:39], s62 offen', 'LABEL L1_nostore']
            fill[1].append('s_add_u32 s62, s62, 256')
        if at == 0:
            A('s_waitcnt lgkmcnt(0)')
        for ks in range(4):
            cin = vr(128+4*at, 4) if ks == 0 else vr(cb, 4)
            A(f'v_mfma_f32_16x16x32_bf16 {vr(cb,4)}, {vr((at*4+ks)*4,4)}, {ar(bb+4*ks,4)}, {cin}')
            for x in fill[ks]:
                if x.startswith('LABEL'): A.label(x.split()[1])
                else: A(x)
    A('s_add_u32 s61, s61, 1')
    A('s_cmp_lt_u32 s61, 8')
    A('s_cbranch_scc1 L1_loop')
    stamp(A, 5)
    A('s_nop 7')
    for cp in (30, 31):
        for r in range(4): A(consume(cp, r))
    A('s_nop 1')
    A(f'v_permlane32_swap_b32 v{ACC+1}, v{ACC+3}')
    A('s_nop 1')
    A(f'v_add_f32 v{VY}, v{ACC+1}, v{ACC+3}')
    A('s_nop 1')
    A(f'v_permlane16_swap_b32 v{VX}, v{VY}')
    A('s_waitcnt lgkmcnt(0)')
    A(f'v_add_f32 v{VE}, v{VX}, v{VY}')
    A(f'v_add_f32 v{VE}, v{VE}, v{LS}')
    A(f'v_mul_f32 v{VE}, s60, v{VE}')
    A(f'v_cvt_pk_bf16_f32 v{VE}, v{VE}, v{LS+1}')
    A(f'buffer_store_dword v{VE}, v{VST}, s[36:39], s62 offen')
    if STAMP:
        A('s_waitcnt vmcnt(0)')
        stamp(A, 6)
        A('s_mov_b32 s98, s27')
        stamp_store(A, 7, 8<<20, None, 24)
    if DBG:
        A('s_waitcnt vmcnt(0)')
        stamp(A, 6)
        A('s_load_dwordx2 s[90:91], s[0:1], 72')
        A('s_waitcnt lgkmcnt(0)')
        A('s_mov_b64 exec, 1')
        A('v_mov_b32 v200, 0')
        A('s_not_b32 s92, s64')
        A('v_mov_b32 v201, s92')
        A('global_atomic_umax v200, v201, s[90:91] offset:32')
        A('v_mov_b32 v201, s76')
        A('global_atomic_umax v200, v201, s[90:91] offset:36')
        for i in range(1, 7):
            A(f's_sub_u32 s92, s{64+2*i}, s64')
            A(f'v_mov_b32 v201, s92')
            A(f'global_atomic_umax v200, v201, s[90:91] offset:{4*(i-1)}')
        A('s_waitcnt vmcnt(0)')
    A.label('L1_end')
    A('s_endpgm')

def k2(A):
    name = 'afm_softmax_kernel'
    A.raw(f'.globl {name}\n.p2align 8\n.type {name},@function')
    A.label(name)
    A('s_cmp_ge_u32 s2, 1024')
    A('s_cbranch_scc1 L2_end')
    stamp(A, 0)
    A('s_load_dwordx2 s[4:5], s[0:1], 0')
    A('s_load_dwordx2 s[6:7], s[0:1], 64')
    A('s_load_dwordx2 s[8:9], s[0:1], 80')
    A('v_lshrrev_b32 v1, 6, v0')
    A('v_and_b32 v2, 63, v0')
    A('v_readfirstlane_b32 s3, v1')
    A('s_lshl_b32 s10, s2, 2')
    A('s_add_u32 s10, s10, s3')
    A('v_and_b32 v3, 31, v2')
    A('v_lshrrev_b32 v4, 5, v2')
    A('v_lshlrev_b32 v5, 2, v3')
    A('s_mul_i32 s11, s10, 104')
    A('s_waitcnt lgkmcnt(0)')
    A('s_mov_b32 s12, s4'); A('s_mov_b32 s13, s5'); A('s_mov_b32 s14, 425984'); A('s_mov_b32 s15, 0x20000')
    A('buffer_load_dword v6, v5, s[12:15], s11 offen')
    A('s_mov_b32 s16, s8'); A('s_or_b32 s17, s9, 0x40000'); A('s_mov_b32 s18, 512000'); A('s_mov_b32 s19, 0x20000')
    A('s_mov_b32 s20, s6'); A('s_mov_b32 s21, s7'); A('s_mov_b32 s22, 8192'); A('s_mov_b32 s23, 0x20000')
    A('v_lshlrev_b32 v7, 2, v4')
    A('v_mov_b32 v8, 501'); A('v_mov_b32 v9, 499')
    E = 16
    I = 32
    for r in range(13): A(f'v_mov_b32 v{E+r}, 0xff80')
    A('s_waitcnt vmcnt(0)')
    stamp(A, 1)
    for r in range(13):
        A(f'ds_bpermute_b32 v{48+r}, v7, v6 offset:{8*r}')
    for r in range(13):
        A(f's_waitcnt lgkmcnt({12-r})')
        vi = 48 + r
        gtlo = (1 << (2*r)) - 1
        gthi = (1 << (2*r+1)) - 1
        vlo = ((1 << 26) - 1) & ~(1 << (2*r))
        vhi = ((1 << 26) - 1) & ~(1 << (2*r+1))
        A(f's_mov_b32 s24, {hex(gtlo)}'); A(f's_mov_b32 s25, {hex(gthi)}')
        A(f'v_sub_u32 v10, v6, v{vi}')
        A(f'v_add_u32 v11, 1000, v10')
        A(f'v_min_u32 v10, v10, v11')
        A(f'v_subb_co_u32 v11, s[26:27], v10, 0, s[24:25]')
        A(f'v_cndmask_b32 v12, v8, v9, s[24:25]')
        A(f'v_lshl_add_u32 v{I+r}, v{vi}, 9, v10')
        A(f'v_cmp_lt_u32 s[{28+2*r}:{29+2*r}], v11, v12')
        A(f's_and_b32 s{28+2*r}, s{28+2*r}, {hex(vlo)}')
        A(f's_and_b32 s{29+2*r}, s{29+2*r}, {hex(vhi)}')
    stamp(A, 2)
    for r in range(13):
        A(f's_mov_b64 exec, s[{28+2*r}:{29+2*r}]')
        A(f'buffer_load_dword v{E+r}, v{I+r}, s[16:19], 0 idxen')
    A('s_mov_b64 exec, -1')
    A('s_waitcnt vmcnt(0)')
    stamp(A, 3)
    EE, SS = 32, 48
    for r in range(13):
        A(f'v_lshlrev_b32 v{EE+r}, 16, v{E+r}')
        A(f'v_and_b32 v{SS+r}, 0xffff0000, v{E+r}')
    A(f'v_max3_f32 v10, v{EE}, v{EE+1}, v{EE+2}')
    for r in range(3, 13, 2):
        A(f'v_max3_f32 v10, v10, v{EE+r}, v{EE+r+1}')
    def reduce(op, v):
        for sh in (1, 2, 4, 8):
            A('s_nop 1')
            A(f'{op}_dpp v{v}, v{v}, v{v} row_shr:{sh} row_mask:0xf bank_mask:0xf')
        A('s_nop 1')
        A(f'{op}_dpp v{v}, v{v}, v{v} row_bcast:15 row_mask:0xa bank_mask:0xf')
        A('s_nop 1')
        A(f'{op}_dpp v{v}, v{v}, v{v} row_bcast:31 row_mask:0xc bank_mask:0xf')
    reduce('v_max_f32', 10)
    A('s_nop 1')
    A('v_readlane_b32 s24, v10, 63')
    A('s_nop 3')
    A('v_mov_b32 v11, 0'); A('v_mov_b32 v12, 0')
    for r in range(13):
        A(f'v_subrev_f32 v{EE+r}, s24, v{EE+r}')
    for r in range(13):
        A(f'v_exp_f32 v{EE+r}, v{EE+r}')
    A('s_nop 0')
    for r in range(13):
        A(f'v_add_f32 v11, v11, v{EE+r}')
        A(f'v_fma_f32 v12, v{EE+r}, v{SS+r}, v12')
    reduce('v_add_f32', 11)
    reduce('v_add_f32', 12)
    A('s_nop 1')
    A('v_rcp_f32 v11, v11')
    A('s_nop 0')
    A('v_mul_f32 v12, v12, v11')
    A('v_cvt_pk_bf16_f32 v12, v12, v12')
    A('s_lshl_b32 s24, s10, 1')
    A('v_mov_b32 v13, 0')
    A('s_mov_b32 exec_lo, 0'); A('s_mov_b32 exec_hi, 0x80000000')
    A('buffer_store_short v12, v13, s[20:23], s24 offen')
    if STAMP:
        A('s_waitcnt vmcnt(0)')
        stamp(A, 4)
        A('s_mov_b32 s98, s10')
        stamp_store(A, 5, 9<<20, None, 8, tmpv=60)
    if DBG:
        A('s_waitcnt vmcnt(0)')
        stamp(A, 4)
        A('s_load_dwordx2 s[90:91], s[0:1], 72')
        A('s_waitcnt lgkmcnt(0)')
        A('s_sub_u32 s90, s90, 512')
        A('s_subb_u32 s91, s91, 0')
        A('s_mov_b64 exec, 1')
        A('v_mov_b32 v60, 0')
        A('s_not_b32 s92, s64')
        A('v_mov_b32 v61, s92')
        A('global_atomic_umax v60, v61, s[90:91] offset:40')
        A('v_mov_b32 v61, s72')
        A('global_atomic_umax v60, v61, s[90:91] offset:44')
        for i in range(1, 5):
            A(f's_sub_u32 s92, s{64+2*i}, s64')
            A(f'v_mov_b32 v61, s92')
            A(f'global_atomic_umax v60, v61, s[90:91] offset:{48+4*(i-1)}')
        A('s_waitcnt vmcnt(0)')
    A.label('L2_end')
    A('s_endpgm')

def kd(A, name, vgpr, acc, sgpr=102):
    A.raw(f'''.amdhsa_kernel {name}
  .amdhsa_next_free_vgpr {vgpr}
  .amdhsa_next_free_sgpr {sgpr}
  .amdhsa_accum_offset {acc}
  .amdhsa_group_segment_fixed_size 0
  .amdhsa_kernarg_size 88
  .amdhsa_user_sgpr_count 2
  .amdhsa_user_sgpr_kernarg_segment_ptr 1
  .amdhsa_system_sgpr_workgroup_id_x 1
.end_amdhsa_kernel''')

def main(out):
    A = Asm()
    A.raw(HDR.rstrip())
    A.raw(f'; @launch kernel=afm_table_kernel grid=(250,1,1) block=(256,1,1) lds={LDS_K1}')
    A.raw('; @launch kernel=afm_softmax_kernel grid=(1024,1,1) block=(256,1,1) lds=0')
    A.raw('.amdgcn_target "amdgcn-amd-amdhsa--gfx950"')
    A.raw('.text')
    k1(A)
    k2(A)
    A.raw('.section .rodata,"a"')
    A.raw('.p2align 6')
    kd(A, 'afm_table_kernel', 512, 256)
    A.raw('.p2align 6')
    kd(A, 'afm_softmax_kernel', 64, 64)
    open(out, 'w').write(A.text())

if __name__ == '__main__':
    if '--stamp' in sys.argv: STAMP = True
    if '--dbg' in sys.argv: DBG = True
    main(sys.argv[1] if len(sys.argv) > 1 else 'cdna_kernels/%s.s' % KN)
```

```python
import sys

KN = 'standalone__factorization_afm__recsys'
HDR = open('cdna_kernels/%s.s.ref' % KN).read().split('; Override')[0]

STAMP = False
DBG = False
class Asm:
    def __init__(self): self.L = []
    def __call__(self, s): self.L.append('  ' + s)
    def label(self, s): self.L.append(s + ':')
    def raw(self, s): self.L.append(s)
    def text(self): return '\n'.join(self.L) + '\n'

def vr(a, n=1): return f'v{a}' if n == 1 else f'v[{a}:{a+n-1}]'
def ar(a, n=1): return f'a{a}' if n == 1 else f'a[{a}:{a+n-1}]'
def sr(a, n=1): return f's{a}' if n == 1 else f's[{a}:{a+n-1}]'

T_ROWS = 504
MISC = T_ROWS * 256
WOFF = 131072
AUXA = WOFF
AUX = WOFF + 4096
LDS_K1 = 163840
LOG2E = 1.4426950408889634
import struct
def f2u(f): return struct.unpack('<I', struct.pack('<f', f))[0]

def stamp(A, slot):
    if STAMP or DBG:
        A(f's_memrealtime s[{64+2*slot}:{65+2*slot}]')

def stamp_store(A, nslots, base_off, wave_sgpr_expr, ws_lo, tmpv=200):
    if not STAMP: return
    A('s_waitcnt lgkmcnt(0)')
    A(f's_mov_b64 exec, 1')
    A(f's_lshl_b32 s99, s98, 6')
    A(f's_add_u32 s99, s99, {base_off}')
    A(f's_add_u32 s96, s{ws_lo}, s99')
    A(f's_addc_u32 s97, s{ws_lo+1}, 0')
    A(f'v_mov_b32 v{tmpv}, 0')
    for i in range(nslots):
        A(f'v_mov_b32 v{tmpv+1}, s{64+2*i}')
        A(f'global_store_dword v{tmpv}, v{tmpv+1}, s[96:97] offset:{4*i}')
    A('s_waitcnt vmcnt(0)')

def k1(A):
    name = 'afm_table_kernel'
    A.raw(f'.globl {name}\n.p2align 8\n.type {name},@function')
    A.label(name)
    A('s_cmp_ge_u32 s2, 250')
    A('s_cbranch_scc1 L1_end')
    stamp(A, 0)
    A('s_load_dwordx16 s[4:19], s[0:1], 0')
    A('s_load_dwordx2 s[24:25], s[0:1], 80')
    A('v_and_b32 v255, 63, v0')
    A('v_lshrrev_b32 v254, 6, v0')
    A('s_nop 0')
    A('v_readfirstlane_b32 s3, v254')
    LANE = 255
    A(f'v_lshrrev_b32 v253, 4, v{LANE}')
    A(f'v_and_b32 v252, 15, v{LANE}')
    G, C16 = 253, 252
    A(f'v_lshlrev_b32 v251, 8, v{G}')
    A(f'v_lshlrev_b32 v250, 2, v{G}')
    for i in range(4):
        A(f'v_or_b32 v249, {i}, v250')
        A(f'v_xor_b32 v249, v249, v{C16}')
        A(f'v_lshl_add_u32 v{240+i}, v249, 4, v251')
    for i in range(4):
        A(f'v_or_b32 v249, {4*i}, v{G}')
        A(f'v_xor_b32 v249, v249, v{C16}')
        A(f'v_lshl_add_u32 v{244+i}, v249, 4, v251')
    A('s_lshl_b32 s26, s2, 2')
    A('s_add_u32 s27, s26, s3')
    A('s_waitcnt lgkmcnt(0)')
    def srd(d, p, n):
        A(f's_mov_b32 s{d}, s{p}'); A(f's_mov_b32 s{d+1}, s{p+1}')
        A(f's_mov_b32 s{d+2}, {n}'); A(f's_mov_b32 s{d+3}, 0x20000')
    srd(28, 6, 256000); srd(32, 12, 32768)
    A('s_lshl_b32 s52, s3, 13')
    A(f's_add_u32 s53, s52, {WOFF}')
    A('s_mov_b32 m0, s53')
    srd(36, 24, 2048000);
    for m in range(8):
        if m == 4:
            A('s_add_u32 s52, s52, 4096'); A('s_add_u32 m0, m0, 4096'); A('s_nop 0')
        A(f'buffer_load_dwordx4 v{240+(m&3)}, s[32:35], s52 offen offset:{(m&3)*1024} lds')
    srd(40, 14, 256); srd(44, 16, 256); srd(48, 18, 256)
    A(f'v_lshrrev_b32 v249, 2, v{C16}')
    A(f'v_lshlrev_b32 v248, 4, v249')
    A('s_lshl_b32 s54, s27, 8')
    TQ = 208
    for ks in range(4):
        A(f'buffer_load_dwordx4 v[{TQ+4*ks}:{TQ+4*ks+3}], v248, s[28:31], s54 offen offset:{ks*64}')
    A(f'v_lshlrev_b32 v247+0, 3, v{G}'.replace('v247+0', 'v239'))
    BR, HR = 144, 176
    for at in range(8):
        A(f'buffer_load_dwordx2 v[{BR+2*at}:{BR+2*at+1}], v239, s[40:43], 0 offen offset:{32*at}')
    for at in range(8):
        A(f'buffer_load_dwordx2 v[{HR+2*at}:{HR+2*at+1}], v239, s[44:47], 0 offen offset:{32*at}')
    A(f'v_lshlrev_b32 v238, 4, v{G}')
    for ks in range(4):
        A(f'buffer_load_dwordx4 a[{32+4*ks}:{32+4*ks+3}], v238, s[44:47], 0 offen offset:{64*ks}')
    A(f'v_lshlrev_b32 v237, 2, v{LANE}')
    A('buffer_load_dword v236, v237, s[28:31], s54 offen')
    A('buffer_load_dword v235, v237, s[48:51], 0 offen')
    n_small = 4 + 16 + 4 + 2
    A('s_lshl_b32 s55, s26, 8')
    A('s_lshl_b32 s56, s3, 12')
    A('s_add_u32 s55, s55, s56')
    A('s_mov_b32 m0, s56')
    ndma = 0
    for kk in range(8):
        for i in range(4):
            last = (kk == 7 and i >= 2)
            A(f's_sub_u32 s58, s55, 256000')
            A(f's_min_u32 s57, s55, s58')
            inc = 1024 if i < 3 else 13312
            A(f's_add_u32 s55, s55, {inc}')
            if last:
                A('s_cmp_eq_u32 s3, 3')
                A(f's_cbranch_scc1 L1_skipdma_{i}')
            A(f'buffer_load_dwordx4 v{244+i}, s[28:31], s57 offen lds')
            if last: A.label(f'L1_skipdma_{i}')
            A(f's_add_u32 m0, m0, {inc}')
            ndma += 1
    A(f'v_cmp_eq_u32 vcc, v{G}, v249')
    A(f'v_and_b32 v234, 1, v{LANE}')
    A('v_cmp_eq_u32 s[60:61], 1, v234')
    A('v_mov_b32 v233, 0xffff')
    A('v_mov_b32 v232, 0xffff0000')
    A('v_cndmask_b32 v234, v233, v232, s[60:61]')
    A('v_cndmask_b32 v234, 0, v234, vcc')
    A(f'v_and_b32 v233, 2, v{LANE}')
    A('v_cmp_eq_u32 vcc, 0, v233')
    A('s_nop 1')
    A('v_cndmask_b32 v232, 0, v234, vcc')
    A('v_cndmask_b32 v233, v234, 0, vcc')
    M0r, M1r = 232, 233
    TRA = 48
    TRA = 192
    A(f'v_bfe_u32 v231, v{LANE}, 2, 2')
    A(f'v_lshlrev_b32 v230, 3, v{G}')
    A('v_add_u32 v230, v230, v231')
    A('v_lshlrev_b32 v230, 8, v230')
    A(f'v_and_b32 v229, 1, v{LANE}')
    A('v_lshl_add_u32 v230, v229, 3, v230')
    A(f'v_add_u32 v230, {WOFF}, v230')
    A(f'v_bfe_u32 v229, v{LANE}, 1, 1')
    A('v_lshlrev_b32 v228, 2, v231')
    for half in range(2):
        A(f'v_lshlrev_b32 v227, 1, v{G}')
        A(f'v_add_u32 v227, {half}, v227')
        A('v_and_b32 v227, 3, v227')
        A('v_or_b32 v227, v227, v228')
        A('v_xor_b32 v227, v227, v229')
        A('v_lshl_add_u32 v227, v227, 4, v230')
        for at in range(8):
            A(f'v_xor_b32 v{TRA+half*8+at}, {at<<5}, v227')
    A(f'v_and_b32 v227, 3, v{C16}')
    A('v_lshlrev_b32 v227, 2, v227')
    A(f'v_lshrrev_b32 v226, 2, v{C16}')
    A('v_or_b32 v227, v227, v226')
    A(f'v_xor_b32 v227, v227, v{G}')
    A(f'v_lshlrev_b32 v226, 8, v{C16}')
    A('v_lshl_add_u32 v226, v227, 4, v226')
    A('s_lshl_b32 s59, s3, 13')
    A(f's_add_u32 s59, s59, {WOFF}')
    A('v_add_u32 v226, s59, v226')
    for ks in range(4):
        A(f'v_xor_b32 v{224 if ks==0 else (225 if ks==1 else (231 if ks==2 else 230))}, {ks<<6}, v226')
    WHA = [224, 225, 231, 230]
    stamp(A, 1)
    A('s_waitcnt vmcnt(30)')
    A('s_barrier')
    stamp(A, 2)
    for rt in range(2):
        for ks in range(4):
            A(f'ds_read_b128 a[{48+(rt*4+ks)*4}:{48+(rt*4+ks)*4+3}], v{WHA[ks]} offset:{rt*4096}')
    AD = [128, 134, 160, 166]
    for ks in range(4):
        a = AD[ks]; q = TQ + 4*ks
        A(f'v_and_b32 v{a}, v{q}, v{M0r}')
        A(f'v_and_b32 v{a+1}, v{q+1}, v{M1r}')
        A(f'v_mov_b32 v{a+2}, 0')
        A(f'v_mov_b32 v{a+3}, 0')
        A(f'v_and_b32 v{a+4}, v{q+2}, v{M0r}')
        A(f'v_and_b32 v{a+5}, v{q+3}, v{M1r}')
    A('s_waitcnt lgkmcnt(0)')
    for rt in range(2):
        for ks in range(4):
            cin = '0' if ks == 0 else vr(208+4*rt, 4)
            A(f'v_mfma_f32_16x16x32_bf16 {vr(208+4*rt,4)}, {ar(48+(rt*4+ks)*4,4)}, {ar(32+4*ks,4)}, {cin}')
    steps = [(ks, at) for ks in range(4) for at in range(8)]
    NB = 6
    def trread(si):
        ks, at = steps[si]; b = 80 + (si % 8) * 4
        A(f'ds_read_b64_tr_b16 a[{b}:{b+1}], v{TRA+at} offset:{ks*8192}')
        A(f'ds_read_b64_tr_b16 a[{b+2}:{b+3}], v{TRA+8+at} offset:{ks*8192+1024}')
    for si in range(NB): trread(si)
    A('s_lshl_b32 s59, s3, 7')
    A(f's_add_u32 s59, s59, {MISC}')
    A(f'v_lshlrev_b32 v226, 4, v{G}')
    A('v_add_u32 v226, s59, v226')
    A('s_nop 4')
    Dbuf = [216, 140, 172]
    Dbuf = [216, 240]
    A(f'ds_write_b128 v226, v[208:211]')
    A(f'ds_write_b128 v226, v[212:215] offset:64')
    nout = 2
    A('s_waitcnt lgkmcnt(0)')
    issued = NB
    def cvt(si):
        ks, at = steps[si]; d = Dbuf[si % 2]; a = (at*4+ks)*4
        A(f'v_cvt_pk_bf16_f32 v{a}, v{d}, v{d+1}')
        A(f'v_cvt_pk_bf16_f32 v{a+1}, v{d+2}, v{d+3}')
        A(f'v_cvt_pk_bf16_f32 v{a+2}, v{d+4}, v{d+5}')
        A(f'v_cvt_pk_bf16_f32 v{a+3}, v{d+6}, v{d+7}')
    for si in range(32):
        ks, at = steps[si]; b = 80 + (si % 8) * 4; d = Dbuf[si % 2]
        if si >= NB:
            A(f's_waitcnt lgkmcnt({min(15, 2*(issued-si-1))})')
        A(f'v_mfma_f32_16x16x32_bf16 {vr(d,4)}, {vr(AD[ks],4)}, {ar(b,4)}, 0')
        A(f'v_mfma_f32_16x16x32_bf16 {vr(d+4,4)}, {vr(AD[ks]+2,4)}, {ar(b,4)}, 0')
        did = False
        if issued < 32:
            trread(issued); issued += 1; did = True
        if si >= 1:
            if si == 1: A('s_nop 3')
            elif not did: A('s_nop 2')
            cvt(si-1)
    A('s_nop 7')
    cvt(31)
    for i in range(8): A(f'v_mov_b32 v{240+i}, v{BR+8+i}')
    for at in range(8):
        src = BR + 2*at if at < 4 else 240 + 2*(at-4)
        d = 128 + 4*at
        A(f'v_lshlrev_b32 v{d}, 16, v{src}');      A(f'v_and_b32 v{d+1}, 0xffff0000, v{src}')
        A(f'v_lshlrev_b32 v{d+2}, 16, v{src+1}');  A(f'v_and_b32 v{d+3}, 0xffff0000, v{src+1}')
    for i in range(8): A(f'v_mov_b32 v{240+i}, v{HR+8+i}')
    for at in range(8):
        src = HR + 2*at if at < 4 else 240 + 2*(at-4)
        d = 160 + 4*at
        A(f'v_lshlrev_b32 v{d}, 16, v{src}');      A(f'v_and_b32 v{d+1}, 0xffff0000, v{src}')
        A(f'v_lshlrev_b32 v{d+2}, 16, v{src+1}');  A(f'v_and_b32 v{d+3}, 0xffff0000, v{src+1}')
    C0 = 216
    A(f'v_mov_b32 v{C0}, 0')
    for i in range(32):
        A(f'v_fma_f32 v{C0}, -|v{128+i}|, v{160+i}, v{C0}')
    stamp(A, 3)
    A('s_barrier')
    A(f'v_lshlrev_b32 v226, 3, v{LANE}')
    A(f'ds_read_b64 v[228:229], v226 offset:{MISC & 0xffff}' if MISC < 65536 else f'v_add_u32 v226, {MISC}, v226')
    if MISC >= 65536: A('ds_read_b64 v[228:229], v226')
    A('v_lshlrev_b32 v224, 16, v236'); A('v_and_b32 v225, 0xffff0000, v236')
    A('v_lshlrev_b32 v230, 16, v235'); A('v_and_b32 v231, 0xffff0000, v235')
    A('v_mul_f32 v230, v230, v224'); A('v_mul_f32 v231, v231, v225')
    A('v_cvt_pk_bf16_f32 v230, v230, v231')
    A('s_waitcnt lgkmcnt(0)')
    A('v_mul_f32 v228, v228, v224'); A('v_mul_f32 v229, v229, v225')
    A('v_cvt_pk_bf16_f32 v228, v228, v229')
    A('s_mul_i32 s59, s3, 544')
    A(f's_add_u32 s59, s59, {AUXA}')
    A(f'v_lshlrev_b32 v226, 2, v{LANE}')
    A('v_add_u32 v226, s59, v226')
    A('ds_write_b32 v226, v228')
    A('ds_write_b32 v226, v230 offset:272')
    A('s_waitcnt vmcnt(0) lgkmcnt(0)')
    A('s_barrier')
    A(f'v_and_b32 v226, 7, v{LANE}')
    A('v_mul_u32_u24 v226, 272, v226')
    A(f'v_lshl_add_u32 v226, v{G}, 4, v226')
    A(f'v_add_u32 v226, {AUXA}, v226')
    for ks in range(4):
        A(f'ds_read_b128 a[{32+4*ks}:{32+4*ks+3}], v226 offset:{64*ks}')
    VB = 212
    for ks in range(4):
        A(f'v_or_b32 v226, {4*ks}, v{G}')
        A(f'v_xor_b32 v226, v226, v{C16}')
        A(f'v_lshlrev_b32 v225, 8, v{C16}')
        A(f'v_lshl_add_u32 v{VB+ks}, v226, 4, v225')
    A('s_lshl_b32 s59, s3, 15')
    for ks in range(4):
        A(f'v_add_u32 v{240+ks}, s59, v{VB+ks}')
    A(f'v_and_b32 v226, 1, v{G}')
    A('v_lshlrev_b32 v226, 13, v226')
    A(f'v_lshl_add_u32 v226, v{C16}, 3, v226')
    A('s_lshl_b32 s59, s3, 10')
    A(f's_add_u32 s59, s59, {AUX}')
    A('v_add_u32 v226, s59, v226')
    A('s_waitcnt lgkmcnt(0)')
    for i in range(8):
        for ks in range(4):
            b = 48 + (i*4+ks)*4
            A(f'ds_read_b128 a[{b}:{b+3}], v{240+ks} offset:{i*4096}')
        if i in (1, 3, 5): A('s_waitcnt lgkmcnt(4)')
    A('s_waitcnt lgkmcnt(0)')
    DT = [192, 196, 200, 204, 228, 232, 236, 244]
    for i in range(8):
        for ks in range(4):
            b = 48 + (i*4+ks)*4
            cin = '0' if ks == 0 else vr(DT[i], 4)
            A(f'v_mfma_f32_16x16x32_bf16 {vr(DT[i],4)}, {ar(32+4*ks,4)}, {ar(b,4)}, {cin}')
    for ks in range(4):
        A(f'ds_read_b128 a[{4*ks}:{4*ks+3}], v{VB+ks}')
    A('s_nop 4')
    for i in range(8):
        A(f'ds_write_b64 v226, v[{DT[i]}:{DT[i]+1}] offset:{i*128}')
        A(f'ds_write_b64 v226, v[{DT[i]+2}:{DT[i]+3}] offset:{i*128+4096}')
    A('s_waitcnt lgkmcnt(0)')
    A('s_barrier')
    stamp(A, 4)
    ACC = 208
    VX, VY, VE = 217, 218, 219
    VAUX, VST = 220, 221
    LS = 222
    A(f's_lshl_b32 s59, s3, 12')
    A(f's_add_u32 s59, s59, {AUX - 512}')
    A(f'v_lshlrev_b32 v{VAUX}, 3, v{LANE}')
    A(f'v_add_u32 v{VAUX}, s59, v{VAUX}')
    A('s_lshl_b32 s59, s27, 9')
    A('s_sub_u32 s59, s59, s3')
    A('s_lshl_b32 s59, s59, 2')
    A(f'v_lshlrev_b32 v{VST}, 2, v{LANE}')
    A(f'v_add_u32 v{VST}, s59, v{VST}')
    A(f's_mov_b32 s60, {f2u(0.5*LOG2E)}')
    A('s_mov_b32 s61, 0')
    A('s_mov_b32 s62, -256')
    def consume(c_prev, r):
        ct, at = divmod(c_prev, 8)
        cb = 192 + 4*(c_prev % 4)
        src2 = f'v{C0}' if (at == 0 and r == 0) else f'v{ACC+ct}'
        return f'v_fma_f32 v{ACC+ct}, |v{cb+r}|, v{160+4*at+r}, {src2}'
    def final_tail():
        pass
    A('.p2align 6')
    A.label('L1_loop')
    for c in range(32):
        ct, at = divmod(c, 8)
        cb = 192 + 4*(c % 4)
        bb = (ct & 1) * 16
        cp = (c - 2) % 32
        fill = [[], [], [], []]
        f = [consume(cp, r) for r in range(4)]
        extra = []
        if 1 <= at <= 4:
            ks2 = at - 1
            nb = ((ct+1) & 1) * 16
            fill[0] = [f[0], f[1]]
            fill[1] = [f'ds_read_b128 a[{nb+4*ks2}:{nb+4*ks2+3}], v{VB+ks2} offset:{(ct+1)*4096}']
            fill[2] = [f[2]]; fill[3] = [f[3]]
        else:
            fill = [[f[0]], [f[1]], [f[2]], [f[3]]]
        if c == 26:
            fill[1].append(f'v_permlane32_swap_b32 v{ACC+0}, v{ACC+2}')
            fill[3].append(f'v_add_f32 v{VX}, v{ACC+0}, v{ACC+2}')
        if c == 29:
            fill[0].append(f'v_add_u32 v{VAUX}, 512, v{VAUX}')
            fill[2] = [f'ds_read_b64 v[{LS}:{LS+1}], v{VAUX}']
            fill[3] = [f[2], f[3]]
        if c == 30:
            for ks in range(2): fill[ks].append(f'v_add_u32 v{VB+ks}, 16384, v{VB+ks}')
            for ks in range(2,4): fill[ks].append(f'v_add_u32 v{VB+ks}, 16384, v{VB+ks}')
        if c == 2:
            fill[1].append(f'v_permlane32_swap_b32 v{ACC+1}, v{ACC+3}')
            fill[3].append(f'v_add_f32 v{VY}, v{ACC+1}, v{ACC+3}')
        if c == 5:
            fill[0].append(f'v_permlane16_swap_b32 v{VX}, v{VY}')
            fill[2].append(f'v_add_f32 v{VE}, v{VX}, v{VY}')
            fill[3].append(f'v_add_f32 v{VE}, v{VE}, v{LS}')
        if c == 6:
            fill[0].append(f'v_mul_f32 v{VE}, s60, v{VE}')
            fill[2].append(f'v_cvt_pk_bf16_f32 v{VE}, v{VE}, v{LS+1}')
        if c == 7:
            fill[0] += ['s_cmp_eq_u32 s61, 0', 's_cbranch_scc1 L1_nostore',
                        f'buffer_store_dword v{VE}, v{VST}, s[36:39], s62 offen', 'LABEL L1_nostore']
            fill[1].append('s_add_u32 s62, s62, 256')
        if at == 0:
            A('s_waitcnt lgkmcnt(0)')
        for ks in range(4):
            cin = vr(128+4*at, 4) if ks == 0 else vr(cb, 4)
            A(f'v_mfma_f32_16x16x32_bf16 {vr(cb,4)}, {vr((at*4+ks)*4,4)}, {ar(bb+4*ks,4)}, {cin}')
            for x in fill[ks]:
                if x.startswith('LABEL'): A.label(x.split()[1])
                else: A(x)
    A('s_add_u32 s61, s61, 1')
    A('s_cmp_lt_u32 s61, 8')
    A('s_cbranch_scc1 L1_loop')
    stamp(A, 5)
    A('s_nop 7')
    for cp in (30, 31):
        for r in range(4): A(consume(cp, r))
    A('s_nop 1')
    A(f'v_permlane32_swap_b32 v{ACC+1}, v{ACC+3}')
    A('s_nop 1')
    A(f'v_add_f32 v{VY}, v{ACC+1}, v{ACC+3}')
    A('s_nop 1')
    A(f'v_permlane16_swap_b32 v{VX}, v{VY}')
    A('s_waitcnt lgkmcnt(0)')
    A(f'v_add_f32 v{VE}, v{VX}, v{VY}')
    A(f'v_add_f32 v{VE}, v{VE}, v{LS}')
    A(f'v_mul_f32 v{VE}, s60, v{VE}')
    A(f'v_cvt_pk_bf16_f32 v{VE}, v{VE}, v{LS+1}')
    A(f'buffer_store_dword v{VE}, v{VST}, s[36:39], s62 offen')
    if STAMP:
        A('s_waitcnt vmcnt(0)')
        stamp(A, 6)
        A('s_mov_b32 s98, s27')
        stamp_store(A, 7, 8<<20, None, 24)
    if DBG:
        A('s_waitcnt vmcnt(0)')
        stamp(A, 6)
        A('s_load_dwordx2 s[90:91], s[0:1], 72')
        A('s_waitcnt lgkmcnt(0)')
        A('s_add_u32 s90, s90, 512')
        A('s_addc_u32 s91, s91, 0')
        A('s_cmp_lg_u32 s3, 0')
        A('s_cbranch_scc1 L1_end')
        A('s_mov_b64 exec, 1')
        A('v_mov_b32 v200, 0')
        A('s_not_b32 s92, s64')
        A('v_mov_b32 v201, s92')
        A('global_atomic_umax v200, v201, s[90:91] offset:32')
        A('v_mov_b32 v201, s76')
        A('global_atomic_umax v200, v201, s[90:91] offset:36')
        for i in range(1, 7):
            A(f's_sub_u32 s92, s{64+2*i}, s64')
            A(f'v_mov_b32 v201, s92')
            A(f'global_atomic_umax v200, v201, s[90:91] offset:{4*(i-1)}')
        A('s_waitcnt vmcnt(0)')
    A.label('L1_end')
    A('s_endpgm')

def k2(A):
    name = 'afm_softmax_kernel'
    A.raw(f'.globl {name}\n.p2align 8\n.type {name},@function')
    A.label(name)
    A('s_cmp_ge_u32 s2, 1024')
    A('s_cbranch_scc1 L2_end')
    stamp(A, 0)
    A('s_load_dwordx2 s[4:5], s[0:1], 0')
    A('s_load_dwordx2 s[6:7], s[0:1], 64')
    A('s_load_dwordx2 s[8:9], s[0:1], 80')
    A('v_lshrrev_b32 v1, 6, v0')
    A('v_and_b32 v2, 63, v0')
    A('v_readfirstlane_b32 s3, v1')
    A('s_lshl_b32 s10, s2, 2')
    A('s_add_u32 s10, s10, s3')
    A('v_and_b32 v3, 31, v2')
    A('v_lshrrev_b32 v4, 5, v2')
    A('v_lshlrev_b32 v5, 2, v3')
    A('s_mul_i32 s11, s10, 104')
    A('s_waitcnt lgkmcnt(0)')
    A('s_mov_b32 s12, s4'); A('s_mov_b32 s13, s5'); A('s_mov_b32 s14, 425984'); A('s_mov_b32 s15, 0x20000')
    A('buffer_load_dword v6, v5, s[12:15], s11 offen')
    A('s_mov_b32 s16, s8'); A('s_or_b32 s17, s9, 0x40000'); A('s_mov_b32 s18, 512000'); A('s_mov_b32 s19, 0x20000')
    A('s_mov_b32 s20, s6'); A('s_mov_b32 s21, s7'); A('s_mov_b32 s22, 8192'); A('s_mov_b32 s23, 0x20000')
    A('v_lshlrev_b32 v7, 2, v4')
    A('v_mov_b32 v8, 501'); A('v_mov_b32 v9, 499')
    E = 16
    I = 32
    for r in range(13): A(f'v_mov_b32 v{E+r}, 0xff80')
    A('s_waitcnt vmcnt(0)')
    stamp(A, 1)
    for r in range(13):
        A(f'ds_bpermute_b32 v{48+r}, v7, v6 offset:{8*r}')
    for r in range(13):
        A(f's_waitcnt lgkmcnt({12-r})')
        vi = 48 + r
        gtlo = (1 << (2*r)) - 1
        gthi = (1 << (2*r+1)) - 1
        vlo = ((1 << 26) - 1) & ~(1 << (2*r))
        vhi = ((1 << 26) - 1) & ~(1 << (2*r+1))
        A(f's_mov_b32 s24, {hex(gtlo)}'); A(f's_mov_b32 s25, {hex(gthi)}')
        A(f'v_sub_u32 v10, v6, v{vi}')
        A(f'v_add_u32 v11, 1000, v10')
        A(f'v_min_u32 v10, v10, v11')
        A(f'v_subb_co_u32 v11, s[26:27], v10, 0, s[24:25]')
        A(f'v_cndmask_b32 v12, v8, v9, s[24:25]')
        A(f'v_lshl_add_u32 v{I+r}, v{vi}, 9, v10')
        A(f'v_cmp_lt_u32 s[{28+2*r}:{29+2*r}], v11, v12')
        A(f's_and_b32 s{28+2*r}, s{28+2*r}, {hex(vlo)}')
        A(f's_and_b32 s{29+2*r}, s{29+2*r}, {hex(vhi)}')
    stamp(A, 2)
    for r in range(13):
        A(f's_mov_b64 exec, s[{28+2*r}:{29+2*r}]')
        A(f'buffer_load_dword v{E+r}, v{I+r}, s[16:19], 0 idxen')
    A('s_mov_b64 exec, -1')
    A('s_waitcnt vmcnt(0)')
    stamp(A, 3)
    EE, SS = 32, 48
    for r in range(13):
        A(f'v_lshlrev_b32 v{EE+r}, 16, v{E+r}')
        A(f'v_and_b32 v{SS+r}, 0xffff0000, v{E+r}')
    A(f'v_max3_f32 v10, v{EE}, v{EE+1}, v{EE+2}')
    for r in range(3, 13, 2):
        A(f'v_max3_f32 v10, v10, v{EE+r}, v{EE+r+1}')
    def reduce(op, v):
        for sh in (1, 2, 4, 8):
            A('s_nop 1')
            A(f'{op}_dpp v{v}, v{v}, v{v} row_shr:{sh} row_mask:0xf bank_mask:0xf')
        A('s_nop 1')
        A(f'{op}_dpp v{v}, v{v}, v{v} row_bcast:15 row_mask:0xa bank_mask:0xf')
        A('s_nop 1')
        A(f'{op}_dpp v{v}, v{v}, v{v} row_bcast:31 row_mask:0xc bank_mask:0xf')
    reduce('v_max_f32', 10)
    A('s_nop 1')
    A('v_readlane_b32 s24, v10, 63')
    A('s_nop 3')
    A('v_mov_b32 v11, 0'); A('v_mov_b32 v12, 0')
    for r in range(13):
        A(f'v_subrev_f32 v{EE+r}, s24, v{EE+r}')
    for r in range(13):
        A(f'v_exp_f32 v{EE+r}, v{EE+r}')
    A('s_nop 0')
    for r in range(13):
        A(f'v_add_f32 v11, v11, v{EE+r}')
        A(f'v_fma_f32 v12, v{EE+r}, v{SS+r}, v12')
    reduce('v_add_f32', 11)
    reduce('v_add_f32', 12)
    A('s_nop 1')
    A('v_rcp_f32 v11, v11')
    A('s_nop 0')
    A('v_mul_f32 v12, v12, v11')
    A('v_cvt_pk_bf16_f32 v12, v12, v12')
    A('s_lshl_b32 s24, s10, 1')
    A('v_mov_b32 v13, 0')
    A('s_mov_b32 exec_lo, 0'); A('s_mov_b32 exec_hi, 0x80000000')
    A('buffer_store_short v12, v13, s[20:23], s24 offen')
    if STAMP:
        A('s_waitcnt vmcnt(0)')
        stamp(A, 4)
        A('s_mov_b32 s98, s10')
        stamp_store(A, 5, 9<<20, None, 8, tmpv=60)
    if DBG:
        A('s_waitcnt vmcnt(0)')
        stamp(A, 4)
        A('s_load_dwordx2 s[90:91], s[0:1], 72')
        A('s_waitcnt lgkmcnt(0)')
        A('s_and_b32 s92, s10, 31')
        A('s_cmp_lg_u32 s92, 31')
        A('s_cbranch_scc1 L2_end')
        A('s_mov_b64 exec, 1')
        A('v_mov_b32 v60, 0')
        A('s_not_b32 s92, s64')
        A('v_mov_b32 v61, s92')
        A('global_atomic_umax v60, v61, s[90:91] offset:40')
        A('v_mov_b32 v61, s72')
        A('global_atomic_umax v60, v61, s[90:91] offset:44')
        for i in range(1, 5):
            A(f's_sub_u32 s92, s{64+2*i}, s64')
            A(f'v_mov_b32 v61, s92')
            A(f'global_atomic_umax v60, v61, s[90:91] offset:{48+4*(i-1)}')
        A('s_waitcnt vmcnt(0)')
    A.label('L2_end')
    A('s_endpgm')

def kd(A, name, vgpr, acc, sgpr=102):
    A.raw(f'''.amdhsa_kernel {name}
  .amdhsa_next_free_vgpr {vgpr}
  .amdhsa_next_free_sgpr {sgpr}
  .amdhsa_accum_offset {acc}
  .amdhsa_group_segment_fixed_size 0
  .amdhsa_kernarg_size 88
  .amdhsa_user_sgpr_count 2
  .amdhsa_user_sgpr_kernarg_segment_ptr 1
  .amdhsa_system_sgpr_workgroup_id_x 1
.end_amdhsa_kernel''')

def main(out):
    A = Asm()
    A.raw(HDR.rstrip())
    A.raw(f'; @launch kernel=afm_table_kernel grid=(250,1,1) block=(256,1,1) lds={LDS_K1}')
    A.raw('; @launch kernel=afm_softmax_kernel grid=(1024,1,1) block=(256,1,1) lds=0')
    A.raw('.amdgcn_target "amdgcn-amd-amdhsa--gfx950"')
    A.raw('.text')
    k1(A)
    k2(A)
    A.raw('.section .rodata,"a"')
    A.raw('.p2align 6')
    kd(A, 'afm_table_kernel', 512, 256)
    A.raw('.p2align 6')
    kd(A, 'afm_softmax_kernel', 64, 64)
    open(out, 'w').write(A.text())

if __name__ == '__main__':
    if '--stamp' in sys.argv: STAMP = True
    if '--dbg' in sys.argv: DBG = True
    main(sys.argv[1] if len(sys.argv) > 1 else 'cdna_kernels/%s.s' % KN)
```

```python
import sys, struct
KN = 'standalone__factorization_afm__recsys'
KNAME = KN + '_kernel'
HDR = open('cdna_kernels/%s.s.ref' % KN).read().split('; Override')[0]
STAMP = False
OPT = {}

class Asm:
    def __init__(self): self.L = []; self.uid = 0
    def __call__(self, s): self.L.append('  ' + s)
    def label(self, s): self.L.append(s + ':')
    def raw(self, s): self.L.append(s)
    def text(self): return '\n'.join(self.L) + '\n'
    def new(self, p): self.uid += 1; return f'{p}_{self.uid}'

def vr(a, n=1): return f'v{a}' if n == 1 else f'v[{a}:{a+n-1}]'
def ar(a, n=1): return f'a{a}' if n == 1 else f'a[{a}:{a+n-1}]'
def f2u(f): return struct.unpack('<I', struct.pack('<f', f))[0]
LOG2E = 1.4426950408889634

T_ROWS = 504
MISC = T_ROWS * 256
BIAS = MISC
HF = MISC + 512
WH = MISC + 1024
FLAGS = MISC + 1536
F_E, F_A, F_C, F_T, F_R, F_W, F_WH, F_Z = FLAGS, FLAGS+16, FLAGS+20, FLAGS+24, FLAGS+28, FLAGS+32, FLAGS+36, FLAGS+40
HRAW = FLAGS + 64
WOFF = 131072
AUX = WOFF
EBUF = WOFF + 16384
SORT = WOFF + 24576
AUXA = SORT
LDS_BYTES = 163840
NWG = 256
NP1 = 250
TAB_ENT = 512000
STAMP_OFF = 8 << 20

S_WG, S_W8 = 2, 3
S_W, S_V1 = 26, 27
SRD_T, SRD_W, SRD_TAB, SRD_TABI, SRD_X, SRD_OUT = 28, 32, 36, 40, 44, 48

def srd(A, d, p, n, stride=0):
    A(f's_mov_b32 s{d}, s{p}')
    if stride: A(f's_or_b32 s{d+1}, s{p+1}, {hex(stride << 16)}')
    else: A(f's_mov_b32 s{d+1}, s{p+1}')
    A(f's_mov_b32 s{d+2}, {n}'); A(f's_mov_b32 s{d+3}, 0x20000')

def stamp(A, slot):
    if STAMP: A(f's_memrealtime s[{80+2*slot}:{81+2*slot}]')

def cstamp(A, slot):
    if STAMP: A(f's_memtime s[{80+2*slot}:{81+2*slot}]')

def stamp_store(A, nslots, tmpv):
    if not STAMP: return
    A('s_waitcnt lgkmcnt(0)')
    A('s_mov_b64 exec, 1')
    A(f's_lshl_b32 s78, s{S_WG}, 3'); A(f's_add_u32 s78, s78, s{S_W8}'); A('s_lshl_b32 s78, s78, 6')
    A(f's_add_u32 s78, s78, {STAMP_OFF}')
    A('s_add_u32 s76, s24, s78'); A('s_addc_u32 s77, s25, 0')
    A(f'v_mov_b32 v{tmpv}, 0')
    for i in range(nslots):
        A(f'v_mov_b32 v{tmpv+1}, s{80+2*i}')
        A(f'global_store_dword v{tmpv}, v{tmpv+1}, s[76:77] offset:{4*i}')
    A('s_waitcnt vmcnt(0)')

def lds_spin(A, addr_v, tmp_v, s_tmp, thr, tag, off=0, sleep=1):
    l = A.new('L_spin' + tag); e = A.new('L_spinx' + tag)
    A('s_mov_b32 s79, 0')
    A.label(l)
    A(f'ds_read_b32 v{tmp_v}, v{addr_v} offset:{off}')
    A('s_waitcnt lgkmcnt(0)')
    A(f'v_readfirstlane_b32 s{s_tmp}, v{tmp_v}')
    A('s_add_u32 s79, s79, 1')
    A(f's_cmp_ge_u32 s{s_tmp}, {thr}')
    A(f's_cbranch_scc1 {e}')
    A('s_cmp_gt_u32 s79, 0x100000')
    A(f's_cbranch_scc1 {e}')
    A(f's_sleep {sleep}')
    A(f's_branch {l}')
    A.label(e)

def mfma_wave(A):
    LANE, G, C16 = 221, 222, 223
    A.label('L_mfma')
    A(f's_cmp_ge_u32 s{S_WG}, {NP1}')
    A('s_cbranch_scc1 L_end')
    A(f's_setprio {OPT.get("mprio", 1)}')
    stamp(A, 0)
    A(f'v_lshrrev_b32 v{G}, 4, v{LANE}')
    A(f'v_and_b32 v{C16}, 15, v{LANE}')
    A(f'v_lshlrev_b32 v206, 8, v{G}')
    A(f'v_lshlrev_b32 v207, 2, v{G}')
    for i in range(4):
        A(f'v_or_b32 v208, {i}, v207')
        A(f'v_xor_b32 v208, v208, v{C16}')
        A(f'v_lshl_add_u32 v{202+i}, v208, 4, v206')
    A(f's_lshl_b32 s52, s{S_W}, 13')
    A(f's_add_u32 s53, s52, {WOFF}')
    A('s_mov_b32 m0, s53')
    A('s_waitcnt lgkmcnt(0)')
    srd(A, SRD_W, 12, 32768)
    for m in range(8):
        if m == 4:
            A('s_add_u32 s52, s52, 4096'); A('s_add_u32 m0, m0, 4096'); A('s_nop 0')
        A(f'buffer_load_dwordx4 v{202+(m&3)}, s[{SRD_W}:{SRD_W+3}], s52 offen offset:{(m&3)*1024} lds')
    A(f'v_lshrrev_b32 v209, 2, v{C16}')
    for ks in range(4):
        A(f'v_or_b32 v208, {4*ks}, v209')
        A(f'v_xor_b32 v208, s{S_W}, v208')
        A(f'v_lshlrev_b32 v208, 4, v208')
        A(f's_lshl_b32 s54, s{S_W}, 8')
        A(f'v_add_u32 v{210+ks}, s54, v208')
    A(f'v_cmp_eq_u32 vcc, v{G}, v209')
    A(f'v_and_b32 v208, 1, v{LANE}')
    A('v_cmp_eq_u32 s[56:57], 1, v208')
    A('v_mov_b32 v207, 0xffff')
    A('v_mov_b32 v206, 0xffff0000')
    A('v_cndmask_b32 v208, v207, v206, s[56:57]')
    A('v_cndmask_b32 v208, 0, v208, vcc')
    A(f'v_and_b32 v207, 2, v{LANE}')
    A('v_cmp_eq_u32 vcc, 0, v207')
    A('s_nop 1')
    A('v_cndmask_b32 v200, 0, v208, vcc')
    A('v_cndmask_b32 v201, v208, 0, vcc')
    TRA = 168
    A(f'v_bfe_u32 v206, v{LANE}, 2, 2')
    A(f'v_lshlrev_b32 v207, 3, v{G}')
    A('v_add_u32 v207, v207, v206')
    A('v_lshlrev_b32 v207, 8, v207')
    A(f'v_and_b32 v208, 1, v{LANE}')
    A('v_lshl_add_u32 v207, v208, 3, v207')
    A(f'v_add_u32 v207, {WOFF}, v207')
    A(f'v_bfe_u32 v208, v{LANE}, 1, 1')
    A('v_lshlrev_b32 v206, 2, v206')
    for half in range(2):
        A(f'v_lshlrev_b32 v209, 1, v{G}')
        A(f'v_add_u32 v209, {half}, v209')
        A('v_and_b32 v209, 3, v209')
        A('v_or_b32 v209, v209, v206')
        A('v_xor_b32 v209, v209, v208')
        A('v_lshl_add_u32 v209, v209, 4, v207')
        for at in range(8):
            A(f'v_xor_b32 v{TRA+half*8+at}, {at<<5}, v209')
    VB, EADDR, FADDR, CNT = 214, 218, 219, 220
    for ks in range(4):
        A(f'v_or_b32 v206, {4*ks}, v{G}')
        A(f'v_xor_b32 v206, v206, v{C16}')
        A(f'v_lshlrev_b32 v207, 8, v{C16}')
        A(f'v_lshl_add_u32 v{VB+ks}, v206, 4, v207')
    A(f's_lshl_b32 s52, s{S_W}, 8')
    A(f's_add_u32 s52, s52, {EBUF - 1024}')
    A(f'v_lshlrev_b32 v{EADDR}, 2, v{LANE}')
    A(f'v_add_u32 v{EADDR}, s52, v{EADDR}')
    A(f's_lshl_b32 s52, s{S_W}, 2')
    A(f's_add_u32 s52, s52, {F_E}')
    A(f'v_mov_b32 v{FADDR}, s52')
    A(f'v_mov_b32 v{CNT}, -1')
    BH = 202
    A(f'v_lshlrev_b32 v{BH}, 4, v{G}')
    A(f'v_add_u32 v{BH}, {BIAS}, v{BH}')
    FB = 203
    A(f'v_mov_b32 v{FB}, {FLAGS}')
    A('v_mov_b32 v204, 1')
    for a in (130, 131, 136, 137, 142, 143, 148, 149): A(f'v_mov_b32 v{a}, 0')
    stamp(A, 1)
    A('s_waitcnt vmcnt(0)')
    A('s_barrier')
    stamp(A, 2)
    cstamp(A, 7)
    TQ = 184
    for ks in range(4):
        A(f'ds_read_b128 v[{TQ+4*ks}:{TQ+4*ks+3}], v{210+ks}')
    AD = [128, 134, 140, 146]
    steps = [(ks, at) for ks in range(4) for at in range(8)]
    NB = 5
    def trread(si):
        ks, at = steps[si]; b = (si % 8) * 4
        A(f'ds_read_b64_tr_b16 a[{b}:{b+1}], v{TRA+at} offset:{ks*8192}')
        A(f'ds_read_b64_tr_b16 a[{b+2}:{b+3}], v{TRA+8+at} offset:{ks*8192+1024}')
    for si in range(NB): trread(si)
    A(f's_waitcnt lgkmcnt({2*NB})')
    for ks in range(4):
        a = AD[ks]; q = TQ + 4*ks
        A(f'v_and_b32 v{a}, v{q}, v200')
        A(f'v_and_b32 v{a+1}, v{q+1}, v201')
        A(f'v_and_b32 v{a+4}, v{q+2}, v200')
        A(f'v_and_b32 v{a+5}, v{q+3}, v201')
    Dbuf = [152, 160]
    issued = NB
    def cvt(si):
        ks, at = steps[si]; d = Dbuf[si % 2]; a = (at*4+ks)*4
        for j in range(4):
            A(f'v_cvt_pk_bf16_f32 v{a+j}, v{d+2*j}, v{d+2*j+1}')
    for si in range(32):
        ks, at = steps[si]; b = (si % 8) * 4; d = Dbuf[si % 2]
        A(f's_waitcnt lgkmcnt({min(15, 2*(issued-si-1))})')
        A(f'v_mfma_f32_16x16x32_bf16 {vr(d,4)}, {vr(AD[ks],4)}, {ar(b,4)}, 0')
        A(f'v_mfma_f32_16x16x32_bf16 {vr(d+4,4)}, {vr(AD[ks]+2,4)}, {ar(b,4)}, 0')
        did = False
        if issued < 32:
            trread(issued); issued += 1; did = True
        if si >= 1:
            if si == 1: A('s_nop 3')
            elif not did: A('s_nop 2')
            cvt(si-1)
    A('s_mov_b64 exec, 1')
    A(f'ds_add_u32 v{FB}, v204 offset:{F_W-FLAGS}')
    A('s_mov_b64 exec, -1')
    for ks in range(4):
        A(f'ds_read_b128 a[{4*ks}:{4*ks+3}], v{VB+ks}')
    A('s_nop 1')
    cvt(31)
    stamp(A, 3)
    lds_spin(A, FB, 206, 60, 1, 'R', off=F_R-FLAGS, sleep=1)
    stamp(A, 4)
    if not OPT.get('gs'): cstamp(A, 8)
    else: cstamp(A, 8)
    for at in range(8):
        A(f'ds_read_b128 v[{128+4*at}:{128+4*at+3}], v{BH} offset:{64*at}')
    A('s_waitcnt lgkmcnt(6)')
    for at in range(8):
        A(f'ds_read_b128 v[{160+4*at}:{160+4*at+3}], v{BH} offset:{512+64*at}')
    ACC, VX, VY = 208, 212, 213
    A('s_mov_b32 s61, 0')
    A(f'v_mov_b32 v{LANE}, v{FB}')
    def consume(c_prev, r):
        ct, at = divmod(c_prev, 8)
        cb = 192 + 4*(c_prev % 4)
        if at == 0 and r == 0:
            return f'v_mul_f32_e64 v{ACC+ct}, |v{cb+r}|, v{160+4*at+r}'
        return f'v_fma_f32 v{ACC+ct}, |v{cb+r}|, v{160+4*at+r}, v{ACC+ct}'
    A('.p2align 6')
    A.label('L_mloop')
    if STAMP and OPT.get('gs'):
        A('s_memtime s[70:71]'); A('s_waitcnt lgkmcnt(0)')
        for q in range(8):
            A(f's_cmp_eq_u32 s61, {q}'); A(f's_cselect_b32 s{80+2*q}, s70, s{80+2*q}')
    for c in range(32):
        ct, at = divmod(c, 8)
        cb = 192 + 4*(c % 4)
        bb = (ct & 1) * 16
        cp = (c - 2) % 32
        f = [consume(cp, r) for r in range(4)]
        if 1 <= at <= 4:
            ks2 = at - 1
            nb = ((ct+1) & 1) * 16
            fill = [[f[0], f[1]], [f'ds_read_b128 a[{nb+4*ks2}:{nb+4*ks2+3}], v{VB+ks2} offset:{(ct+1)*4096}'], [f[2]], [f[3]]]
        else:
            fill = [[f[0]], [f[1]], [f[2]], [f[3]]]
        if c == 26:
            fill[2].append(f'v_permlane32_swap_b32 v{ACC+0}, v{ACC+2}')
        if c == 27:
            fill[2].append(f'v_add_f32 v{VX}, v{ACC+0}, v{ACC+2}')
        if c == 30:
            for ks in range(4): fill[ks].append(f'v_add_u32 v{VB+ks}, 16384, v{VB+ks}')
        if c == 2:
            fill[2].append(f'v_permlane32_swap_b32 v{ACC+1}, v{ACC+3}')
        if c == 3:
            fill[2].append(f'v_add_f32 v{VY}, v{ACC+1}, v{ACC+3}')
        if c == 5:
            fill[0].append(f'v_permlane16_swap_b32 v{VX}, v{VY}')
            fill[2].append(f'v_add_f32 v{VX}, v{VX}, v{VY}')
            fill[3].append(f'v_add_u32 v{CNT}, 1, v{CNT}')
        if c == 6:
            fill[0] += ['s_cmp_eq_u32 s61, 0', 's_cbranch_scc1 L_noE', f'ds_write_b32 v{EADDR}, v{VX}',
                        f'ds_write_b32 v{FADDR}, v{CNT}', 'LABEL L_noE']
            fill[2].append(f'v_add_u32 v{EADDR}, 1024, v{EADDR}')
        if at == 0:
            if c == 0 or c == 8 or c == 16:
                A('s_waitcnt lgkmcnt(0)')
            else:
                A('s_cmp_lg_u32 s61, 0')
                A('s_cbranch_scc1 L_tok')
                lds_spin(A, LANE, G, 60, 4, 'T', off=F_T-FLAGS, sleep=1)
                A.label('L_tok')
                A('s_waitcnt lgkmcnt(0)')
        for ks in range(4):
            cin = vr(128+4*at, 4) if ks == 0 else vr(cb, 4)
            A(f'v_mfma_f32_16x16x32_bf16 {vr(cb,4)}, {vr((at*4+ks)*4,4)}, {ar(bb+4*ks,4)}, {cin}')
            for x in fill[ks]:
                if x.startswith('LABEL'): A.label(x.split()[1])
                else: A(x)
    A('s_add_u32 s61, s61, 1')
    A(f's_cmp_lt_u32 s61, 8')
    A('s_cbranch_scc1 L_mloop')
    if not OPT.get('gs'): stamp(A, 5)
    cstamp(A, 9)
    A('s_nop 7')
    for cp in (30, 31):
        for r in range(4): A(consume(cp, r))
    A('s_nop 1')
    A(f'v_permlane32_swap_b32 v{ACC+1}, v{ACC+3}')
    A('s_nop 1')
    A(f'v_add_f32 v{VY}, v{ACC+1}, v{ACC+3}')
    A(f'v_add_u32 v{CNT}, 1, v{CNT}')
    A('s_nop 0')
    A(f'v_permlane16_swap_b32 v{VX}, v{VY}')
    A('s_nop 1')
    A(f'v_add_f32 v{VX}, v{VX}, v{VY}')
    A(f'ds_write_b32 v{EADDR}, v{VX}')
    A(f'ds_write_b32 v{FADDR}, v{CNT}')
    A('s_waitcnt lgkmcnt(0)')
    if not OPT.get('gs'): stamp(A, 6)
    stamp_store(A, 10, 200)
    A('s_endpgm')

def helper_wave(A):
    LANE, G, C16, L4 = 223, 222, 221, 220
    VAL = 0
    II, JJ = 4, 10
    HFR = 16
    BD, HD, PD, TD = 32, 33, 34, 35
    TV = 36
    BASE = 40
    FB, ONE, WB, LB, EA = 41, 44, 45, 46, 47
    FE = 42
    IDX = 48; RES = 72; QA = 96; RANK = 120
    T0 = 144
    AF = 176
    LA, ST = 216, 217
    S_C0K, S_K = 68, 69
    HP = OPT.get('hprio', 3)
    LP = OPT.get('lprio', 0)

    A.label('L_help')
    stamp(A, 0)
    A(f'v_lshrrev_b32 v{G}, 4, v{LANE}')
    A(f'v_and_b32 v{C16}, 15, v{LANE}')
    A(f'v_lshlrev_b32 v{L4}, 2, v{LANE}')
    A(f'v_mov_b32 v{FB}, {FLAGS}')
    A(f'v_mov_b32 v{ONE}, 1')

    def idx_loads():
        srd(A, SRD_X, 4, 425984)
        A(f's_lshl_b32 s52, s{S_WG}, 2'); A(f's_add_u32 s52, s52, s{S_W}'); A('s_mul_i32 s52, s52, 416')
        for bb in range(4):
            A(f'buffer_load_dword v{VAL+bb}, v{L4}, s[{SRD_X}:{SRD_X+3}], s52 offen offset:{104*bb}')
        srd(A, 56, 8, 1300); srd(A, 60, 10, 1300)
        A(f'v_lshlrev_b32 v{T0+30}, 4, v{LANE}'); A(f'v_lshlrev_b32 v{T0+31}, 3, v{LANE}')
        A(f'buffer_load_dwordx4 v[{II}:{II+3}], v{T0+30}, s[56:59], 0 offen')
        A(f'buffer_load_dwordx2 v[{II+4}:{II+5}], v{T0+31}, s[56:59], 0 offen offset:1024')
        A(f'buffer_load_dwordx4 v[{JJ}:{JJ+3}], v{T0+30}, s[60:63], 0 offen')
        A(f'buffer_load_dwordx2 v[{JJ+4}:{JJ+5}], v{T0+31}, s[60:63], 0 offen offset:1024')
    def tdma(kk):
        for i in range(4):
            last = (kk == 7 and i >= 2)
            A('s_sub_u32 s58, s100, 256000')
            A('s_min_u32 s57, s100, s58')
            inc = 1024 if i < 3 else 13312
            A(f's_add_u32 s100, s100, {inc}')
            if last:
                A(f's_cmp_eq_u32 s{S_W}, 3')
                A(f's_cbranch_scc1 L_skipdma_{i}')
            A(f'buffer_load_dwordx4 v{TV+i}, s[{SRD_T}:{SRD_T+3}], s57 offen lds')
            if last: A.label(f'L_skipdma_{i}')
            A(f's_add_u32 m0, m0, {inc}')
    def reduce(op, v):
        for sh in (1, 2, 4, 8):
            A('s_nop 1'); A(f'{op}_dpp v{v}, v{v}, v{v} row_shr:{sh} row_mask:0xf bank_mask:0xf')
        A('s_nop 1'); A(f'{op}_dpp v{v}, v{v}, v{v} row_bcast:15 row_mask:0xa bank_mask:0xf')
        A('s_nop 1'); A(f'{op}_dpp v{v}, v{v}, v{v} row_bcast:31 row_mask:0xc bank_mask:0xf')
    def bump(f):
        A('s_mov_b64 exec, 1')
        A(f'ds_add_u32 v{FB}, v{ONE} offset:{f-FLAGS}')
        A('s_mov_b64 exec, -1')
    def spin(f, thr, tag, tmp=None, sleep=1, prio=None):
        A('s_setprio 0')
        lds_spin(A, FB, tmp if tmp is not None else T0+29, 60, thr, tag, off=f-FLAGS, sleep=2)
        A(f's_setprio {HP if prio is None else prio}')
    def mask(k):
        if k == 4: A('s_mov_b32 exec_hi, 7')
        if k == 5: A('s_mov_b32 exec_hi, 3')
    def unmask(k):
        if k >= 4: A('s_mov_b32 exec_hi, -1')
    def prep_setup():
        for k in range(6):
            A(f'v_lshlrev_b32 v{II+k}, 2, v{II+k}'); A(f'v_lshlrev_b32 v{JJ+k}, 2, v{JJ+k}')
        A(f'v_lshl_or_b32 v{VAL}, v{VAL+1}, 16, v{VAL}')
        A(f'v_lshl_or_b32 v{VAL+2}, v{VAL+3}, 16, v{VAL+2}')
    def prep_consts():
        A('s_mov_b32 s70, 0x01f401f4'); A('s_mov_b32 s71, 0x03e803e8'); A('s_mov_b32 s72, 0x000f000f'); A('s_mov_b32 s73, 0x00030003')
        A(f's_lshl_b32 s59, s{S_W}, 11'); A(f's_add_u32 s59, s59, {SORT}')
        A(f'v_add_u32 v{LB}, s59, v{L4}')
        A(f's_add_u32 s74, s59, 1536')
        A(f'v_mov_b32 v{WB}, s74')
        A(f's_lshr_b32 s75, s59, 2')
    def prep():
        P = T0
        def bp(p, k):
            A(f'ds_bpermute_b32 v{P+12*p+2*k}, v{II+k}, v{VAL+2*p}')
            A(f'ds_bpermute_b32 v{P+12*p+2*k+1}, v{JJ+k}, v{VAL+2*p}')
        def comp(p, k):
            bA, bB = 2*p, 2*p+1
            vi, vj = P+12*p+2*k, P+12*p+2*k+1
            lo, hi, dl, m = T0+24, T0+25, T0+26, T0+27
            A(f'v_pk_min_u16 v{lo}, v{vi}, v{vj}')
            A(f'v_pk_max_u16 v{hi}, v{vi}, v{vj}')
            A(f'v_pk_sub_u16 v{dl}, v{hi}, v{lo}')
            A(f'v_pk_sub_i16 v{m}, s70, v{dl}')
            A(f'v_pk_sub_u16 v{vi}, s71, v{dl}')
            A(f'v_pk_ashrrev_i16 v{m}, s72, v{m}')
            A(f'v_bfi_b32 v{lo}, v{m}, v{hi}, v{lo}')
            A(f'v_bfi_b32 v{dl}, v{m}, v{vi}, v{dl}')
            A(f'v_and_b32 v{hi}, s73, v{lo}')
            A(f'v_pk_add_u16 v{dl}, v{dl}, v{hi}')
            ia, ib = IDX + 6*bA + k, IDX + 6*bB + k
            A(f'v_lshlrev_b32_sdwa v{ia}, 9, v{lo} dst_sel:DWORD dst_unused:UNUSED_PAD src0_sel:DWORD src1_sel:WORD_0')
            A(f'v_lshlrev_b32_sdwa v{ib}, 9, v{lo} dst_sel:DWORD dst_unused:UNUSED_PAD src0_sel:DWORD src1_sel:WORD_1')
            A(f'v_add_u32_sdwa v{ia}, v{ia}, v{dl} dst_sel:DWORD dst_unused:UNUSED_PAD src0_sel:DWORD src1_sel:WORD_0')
            A(f'v_add_u32_sdwa v{ib}, v{ib}, v{dl} dst_sel:DWORD dst_unused:UNUSED_PAD src0_sel:DWORD src1_sel:WORD_1')
            qa, qb = QA + 6*bA + k, QA + 6*bB + k
            A(f'v_lshrrev_b32 v{qa}, 4, v{dl}')
            A(f'v_lshrrev_b32 v{qb}, 20, v{dl}')
            A(f'v_and_or_b32 v{qa}, v{qa}, 28, v{WB}')
            A(f'v_and_or_b32 v{qb}, v{qb}, 28, v{WB}')
        for k in range(6): bp(0, k)
        for k in range(6):
            A('s_waitcnt lgkmcnt(10)')
            bp(1, k)
            comp(0, k)
        for k in range(6):
            A(f's_waitcnt lgkmcnt({10-2*k})')
            comp(1, k)
    def sort_count():
        A(f'v_add_u32 v{T0}, s74, v{L4}'); A(f'v_mov_b32 v{T0+1}, 0')
        A('s_mov_b32 exec_hi, 0')
        A(f'ds_write_b32 v{T0}, v{T0+1}')
        A('s_mov_b32 exec_hi, -1')
        for bb in range(4):
            for k in range(6):
                mask(k)
                A(f'ds_add_rtn_u32 v{RANK+6*bb+k}, v{QA+6*bb+k}, v{ONE} offset:{32*bb}')
                unmask(k)
            A('s_waitcnt lgkmcnt(8)')
        A(f'ds_read_b32 v{T0+1}, v{T0}')
        A(f'v_and_b32 v{T0+2}, 7, v{LANE}')
        A('s_waitcnt lgkmcnt(0)')
        for sh in (1, 2, 4):
            A(f'v_cmp_le_u32 vcc, {sh}, v{T0+2}')
            A(f'v_mov_b32_dpp v{T0+3}, v{T0+1} row_shr:{sh} row_mask:0xf bank_mask:0xf bound_ctrl:0')
            A('s_nop 0')
            A(f'v_cndmask_b32 v{T0+3}, 0, v{T0+3}, vcc')
            A(f'v_add_u32 v{T0+1}, v{T0+1}, v{T0+3}')
            A('s_nop 0')
        A(f'v_cmp_le_u32 vcc, 1, v{T0+2}')
        A(f'v_mov_b32_dpp v{T0+3}, v{T0+1} row_shr:1 row_mask:0xf bank_mask:0xf bound_ctrl:0')
        A('s_nop 0')
        A(f'v_cndmask_b32 v{T0+3}, 0, v{T0+3}, vcc')
        A(f'v_add_u32 v{BASE}, s75, v{T0+3}')
    def sort_place():
        for r0 in (0, 12):
            for r in range(r0, r0+12):
                A(f'ds_bpermute_b32 v{T0+(r-r0)}, v{QA+r}, v{BASE} offset:{32*(r//6)}')
            for r in range(r0, r0+12):
                A(f's_waitcnt lgkmcnt({11-(r-r0)})')
                A(f'v_add_lshl_u32 v{QA+r}, v{T0+(r-r0)}, v{RANK+r}, 2')
        for bb in range(4):
            for k in range(6):
                mask(k)
                A(f'ds_write_b32 v{QA+6*bb+k}, v{IDX+6*bb+k}')
                unmask(k)
            A('s_waitcnt lgkmcnt(8)')
            for k in range(6):
                A(f'ds_read_b32 v{IDX+6*bb+k}, v{LB} offset:{256*k}')
    def res_init():
        for bb in range(4): A(f'v_mov_b32 v{RES+6*bb+5}, 0xff80')
    def finalize(q):
        lds_spin(A, FE, T0+29, 60, q+1, f'E{q}')
        A(f'ds_read_b32 v{T0+24}, v{EA} offset:{1024*q}')
        A(f'ds_read_b64 v[{T0+26}:{T0+27}], v{LA} offset:{512*q}')
        A(f'v_mov_b32 v{T0+25}, s{S_C0K}')
        A('s_waitcnt lgkmcnt(0)')
        A(f'v_add_f32 v{T0+24}, v{T0+24}, v{T0+26}')
        A(f'v_fma_f32 v{T0+24}, v{T0+24}, s{S_K}, v{T0+25}')
        A(f'v_cvt_pk_bf16_f32 v{T0+24}, v{T0+24}, v{T0+27}')
        A(f'v_max_u32 v{T0+24}, 1, v{T0+24}')
        A(f'buffer_store_dword v{T0+24}, v{ST}, s[{SRD_TAB}:{SRD_TAB+3}], 0 offen offset:{256*q} sc1')
    def zero_check():
        l = A.new('L_zc'); e = A.new('L_zcx')
        A(f'v_mov_b32 v{T0+1}, 4')
        A(f'v_cmp_le_u32 vcc, 58, v{LANE}')
        A('s_nop 1')
        A(f'v_cndmask_b32 v{T0+1}, v{T0+1}, 3, vcc')
        A('s_mov_b32 s79, 0')
        A.label(l)
        A(f'global_load_dword v{T0}, v{L4}, s[22:23] sc1')
        A('s_waitcnt vmcnt(0)')
        A(f'v_cmp_ne_u32 vcc, v{T0}, v{T0+1}')
        A('s_add_u32 s79, s79, 1')
        A(f's_cbranch_vccz {e}')
        A('s_cmp_gt_u32 s79, 0x40000'); A(f's_cbranch_scc1 {e}')
        A('s_sleep 8')
        A(f's_branch {l}')
        A.label(e)
    def gather(ks_):
        for k in ks_:
            for bb in range(4):
                r = 6*bb + k
                if k == 5: A('s_mov_b64 exec, 0x1f')
                A(f'buffer_load_dword v{RES+r}, v{IDX+r}, s[{SRD_TABI}:{SRD_TABI+3}], 0 idxen sc1')
                if k == 5: A('s_mov_b64 exec, -1')

    prep_consts()
    A(f'v_lshlrev_b32 v{T0+1}, 8, v{G}')
    for i in range(4):
        A(f'v_or_b32 v{T0+2}, {4*i}, v{G}')
        A(f'v_xor_b32 v{T0+2}, v{T0+2}, v{C16}')
        A(f'v_lshl_add_u32 v{TV+i}, v{T0+2}, 4, v{T0+1}')
    A(f's_lshl_b32 s100, s{S_WG}, 10')
    A(f's_lshl_b32 s101, s{S_W}, 12')
    A('s_add_u32 s100, s100, s101')
    A('s_mov_b32 m0, s101')
    A(f's_lshl_b32 s59, s{S_W}, 8'); A(f's_add_u32 s59, s59, {EBUF}'); A(f'v_add_u32 v{EA}, s59, v{L4}')
    A(f's_lshl_b32 s59, s{S_W}, 12'); A(f's_add_u32 s59, s59, {AUX}')
    A(f'v_lshlrev_b32 v{LA}, 3, v{LANE}'); A(f'v_add_u32 v{LA}, s59, v{LA}')
    A(f's_lshl_b32 s59, s{S_V1}, 11'); A(f'v_add_u32 v{ST}, s59, v{L4}')
    A(f's_lshl_b32 s59, s{S_W}, 2'); A(f's_add_u32 s59, s59, {F_E}'); A(f'v_mov_b32 v{FE}, s59')
    res_init()
    A('s_waitcnt lgkmcnt(0)')
    srd(A, SRD_TABI, 24, TAB_ENT, stride=4)
    srd(A, SRD_OUT, 20, 8192)
    A(f's_cmp_ge_u32 s{S_WG}, {NP1}')
    A('s_cbranch_scc1 L_hspecial')
    srd(A, SRD_T, 6, 256000)
    tdma(0)
    srd(A, 56, 14, 256); srd(A, 60, 16, 256); srd(A, 64, 18, 256)
    A(f'buffer_load_dword v{HD}, v{L4}, s[60:63], 0 offen')
    A(f'buffer_load_dword v{BD}, v{L4}, s[56:59], 0 offen')
    srd(A, SRD_TAB, 24, TAB_ENT*4)
    A(f'v_mov_b32 v{T0+5}, 0')
    A(f'v_add_u32 v{T0+6}, {FLAGS}, v{L4}')
    A(f's_mov_b64 exec, 0xffff')
    A(f'ds_write_b32 v{T0+6}, v{T0+5}')
    A('s_mov_b64 exec, -1')
    A(f'v_and_b32 v{T0+7}, 3, v{C16}'); A(f'v_lshlrev_b32 v{T0+7}, 2, v{T0+7}')
    A(f'v_lshrrev_b32 v{T0+8}, 2, v{C16}'); A(f'v_or_b32 v{T0+7}, v{T0+7}, v{T0+8}')
    A(f'v_xor_b32 v{T0+7}, v{T0+7}, v{G}')
    A(f'v_lshlrev_b32 v{T0+8}, 8, v{C16}')
    A(f'v_lshl_add_u32 v{T0+8}, v{T0+7}, 4, v{T0+8}')
    A(f's_lshl_b32 s59, s{S_W}, 13'); A(f's_add_u32 s59, s59, {WOFF}')
    A(f'v_add_u32 v{T0+8}, s59, v{T0+8}')
    for ks in range(4): A(f'v_xor_b32 v{T0+10+ks}, {ks<<6}, v{T0+8}')
    A(f'v_lshlrev_b32 v{T0+14}, 4, v{G}'); A(f'v_add_u32 v{T0+14}, {HRAW}, v{T0+14}')
    A(f'v_add_u32 v{T0+15}, {HRAW}, v{L4}')
    A(f'v_lshlrev_b32 v{T0+4}, 3, v{LANE}'); A(f'v_add_u32 v{T0+4}, {BIAS}, v{T0+4}')
    A(f's_lshl_b32 s59, s{S_W}, 7'); A(f's_add_u32 s59, s59, {WH}')
    A(f'v_lshlrev_b32 v{T0+16}, 4, v{G}'); A(f'v_add_u32 v{T0+16}, s59, v{T0+16}')
    if not OPT.get('cs'): stamp(A, 1)
    A('s_waitcnt vmcnt(0) lgkmcnt(0)')
    A('s_barrier')
    if not OPT.get('cs'): stamp(A, 2)
    A(f's_setprio {HP}')
    LATE = OPT.get('latet')
    if not LATE: tdma(1)
    A(f'ds_write_b32 v{T0+15}, v{HD}')
    WF = 176
    for rt in range(2):
        for ks in range(4):
            b = WF + (rt*4+ks)*4
            A(f'ds_read_b128 v[{b}:{b+3}], v{T0+10+ks} offset:{rt*4096}')
    for ks in range(4):
        A(f'ds_read_b128 v[{HFR+4*ks}:{HFR+4*ks+3}], v{T0+14} offset:{64*ks}')
    A(f'v_lshlrev_b32 v{T0}, 16, v{BD}'); A(f'v_and_b32 v{T0+1}, 0xffff0000, v{BD}')
    A(f'v_lshlrev_b32 v{T0+2}, 16, v{HD}'); A(f'v_and_b32 v{T0+3}, 0xffff0000, v{HD}')
    A(f's_cmp_lg_u32 s{S_W}, 0')
    A('s_cbranch_scc1 L_nobias')
    A('s_waitcnt lgkmcnt(6)')
    A(f'ds_write_b64 v{T0+4}, v[{T0}:{T0+1}]')
    A(f'ds_write_b64 v{T0+4}, v[{T0+2}:{T0+3}] offset:512')
    bump(F_R)
    A.label('L_nobias')
    C0V = T0 + 5
    A(f'v_mul_f32_e64 v{C0V}, -|v{T0}|, v{T0+2}')
    A(f'v_fma_f32 v{C0V}, -|v{T0+1}|, v{T0+3}, v{C0V}')
    A('s_waitcnt lgkmcnt(0)')
    WD = 208
    for rt in range(2):
        for ks in range(4):
            b = WF + (rt*4+ks)*4
            cin = '0' if ks == 0 else vr(WD+4*rt, 4)
            A(f'v_mfma_f32_16x16x32_bf16 {vr(WD+4*rt,4)}, {vr(b,4)}, {vr(HFR+4*ks,4)}, {cin}')
    if not LATE: tdma(2)
    else: A('s_nop 7')
    reduce('v_add_f32', C0V)
    A(f'ds_write_b128 v{T0+16}, v[{WD}:{WD+3}]')
    A(f'ds_write_b128 v{T0+16}, v[{WD+4}:{WD+7}] offset:64')
    bump(F_WH)
    A(f'v_readlane_b32 s{S_C0K}, v{C0V}, 63')
    if LATE:
        spin(F_W, 4, 'W0')
        tdma(1); tdma(2)
    for kk in range(3, 8): tdma(kk)
    A(f's_mov_b32 s{S_K}, {f2u(0.5*LOG2E)}')
    A(f'v_mov_b32 v{T0+1}, s{S_C0K}')
    A(f'v_mul_f32 v{T0+1}, s{S_K}, v{T0+1}')
    A(f'buffer_load_dword v{PD}, v{L4}, s[64:67], 0 offen')
    A(f'v_readfirstlane_b32 s{S_C0K}, v{T0+1}')
    idx_loads()
    for i in range(4): A(f'v_mov_b32 v{T0+20+i}, 0')
    A(f'v_lshlrev_b32 v{T0+19}, 4, v{LANE}')
    A(f's_lshl_b32 s55, s{S_V1}, 11')
    A(f'buffer_store_dwordx4 v[{T0+20}:{T0+23}], v{T0+19}, s[{SRD_TAB}:{SRD_TAB+3}], s55 offen sc1')
    A(f'buffer_store_dwordx4 v[{T0+20}:{T0+23}], v{T0+19}, s[{SRD_TAB}:{SRD_TAB+3}], s55 offen offset:1024 sc1')
    if not OPT.get('cs'): stamp(A, 3)
    A('s_waitcnt vmcnt(11)')
    bump(F_T)
    if not OPT.get('cs'): stamp(A, 4)
    A(f'v_lshrrev_b32 v{T0}, 2, v{LANE}'); A(f'v_xor_b32 v{T0}, s{S_W}, v{T0}')
    A(f'v_lshlrev_b32 v{T0}, 4, v{T0}'); A(f'v_and_b32 v{T0+1}, 3, v{LANE}')
    A(f'v_lshl_add_u32 v{T0}, v{T0+1}, 2, v{T0}')
    A(f's_lshl_b32 s59, s{S_W}, 8'); A(f'v_add_u32 v{T0}, s59, v{T0}')
    A(f'ds_read_b32 v{TD}, v{T0}')
    A(f'v_lshlrev_b32 v{T0}, 3, v{LANE}'); A(f'v_add_u32 v{T0}, {WH}, v{T0}')
    A(f's_lshl_b32 s59, s{S_W}, 15')
    for ks in range(4):
        A(f'v_or_b32 v{T0+10}, {4*ks}, v{G}'); A(f'v_xor_b32 v{T0+10}, v{T0+10}, v{C16}')
        A(f'v_lshlrev_b32 v{T0+11}, 8, v{C16}')
        A(f'v_lshl_add_u32 v{T0+12+ks}, v{T0+10}, 4, v{T0+11}')
        A(f'v_add_u32 v{T0+12+ks}, s59, v{T0+12+ks}')
    A(f'v_and_b32 v{T0+16}, 1, v{G}'); A(f'v_lshlrev_b32 v{T0+16}, 13, v{T0+16}')
    A(f'v_lshl_add_u32 v{T0+16}, v{C16}, 3, v{T0+16}')
    A(f's_lshl_b32 s59, s{S_W}, 10'); A(f's_add_u32 s59, s59, {AUX}')
    A(f'v_add_u32 v{T0+16}, s59, v{T0+16}')
    A(f'v_and_b32 v{T0+17}, 7, v{LANE}'); A(f'v_mul_u32_u24 v{T0+17}, 272, v{T0+17}')
    A(f'v_lshl_add_u32 v{T0+17}, v{G}, 4, v{T0+17}'); A(f'v_add_u32 v{T0+17}, {AUXA}, v{T0+17}')
    spin(F_WH, 4, 'WH', sleep=0)
    A(f'ds_read_b64 v[{T0+2}:{T0+3}], v{T0}')
    A(f's_mul_i32 s59, s{S_W}, 544'); A(f's_add_u32 s59, s59, {AUXA}')
    A(f'v_add_u32 v{T0+1}, s59, v{L4}')
    A('s_waitcnt vmcnt(10) lgkmcnt(0)')
    A(f'v_lshlrev_b32 v{T0+4}, 16, v{TD}'); A(f'v_and_b32 v{T0+5}, 0xffff0000, v{TD}')
    A(f'v_lshlrev_b32 v{T0+6}, 16, v{PD}'); A(f'v_and_b32 v{T0+7}, 0xffff0000, v{PD}')
    A(f'v_mul_f32 v{T0+6}, v{T0+6}, v{T0+4}'); A(f'v_mul_f32 v{T0+7}, v{T0+7}, v{T0+5}')
    A(f'v_mul_f32 v{T0+2}, v{T0+2}, v{T0+4}'); A(f'v_mul_f32 v{T0+3}, v{T0+3}, v{T0+5}')
    A(f'v_cvt_pk_bf16_f32 v{T0+6}, v{T0+6}, v{T0+7}')
    A(f'v_cvt_pk_bf16_f32 v{T0+2}, v{T0+2}, v{T0+3}')
    spin(F_W, 4, 'W', sleep=0)
    A(f'ds_write_b32 v{T0+1}, v{T0+2}')
    A(f'ds_write_b32 v{T0+1}, v{T0+6} offset:272')
    bump(F_A)
    spin(F_T, 4, 'T2', sleep=0)
    def bbuf(i, ks):
        return vr(48+16*i+4*ks, 4) if i < 6 else ar(16*(i-6)+4*ks, 4)
    n = 0
    for i in range(8):
        for ks in range(4):
            A(f'ds_read_b128 {bbuf(i,ks)}, v{T0+12+ks} offset:{i*4096}')
            n += 1
        if i in (2, 4, 6): A('s_waitcnt lgkmcnt(4)')
    spin(F_A, 4, 'A', sleep=0)
    for ks in range(4):
        A(f'ds_read_b128 v[{AF+4*ks}:{AF+4*ks+3}], v{T0+17} offset:{64*ks}')
    A('s_waitcnt lgkmcnt(0)')
    A('s_setprio 3')
    DD = 192
    def dreg(i): return 192 + 4*i if i < 6 else T0 + 20 + 4*(i-6)
    for i in range(8):
        for ks in range(4):
            cin = '0' if ks == 0 else vr(dreg(i), 4)
            A(f'v_mfma_f32_16x16x32_bf16 {vr(dreg(i),4)}, {vr(AF+4*ks,4)}, {bbuf(i,ks)}, {cin}')
    A(f's_setprio {HP}')
    for i in range(8):
        if i == 6: A('s_nop 3')
        d = dreg(i)
        A(f'ds_write_b64 v{T0+16}, v[{d}:{d+1}] offset:{i*128}')
        A(f'ds_write_b64 v{T0+16}, v[{d+2}:{d+3}] offset:{i*128+4096}')
        if i in (3,): A('s_waitcnt lgkmcnt(4)')
    bump(F_C)
    if not OPT.get('cs'): stamp(A, 5)
    A('s_waitcnt vmcnt(0)')
    bump(F_Z)
    A(f's_cmp_lg_u32 s{S_W}, 0')
    A('s_cbranch_scc1 L_nopost')
    spin(F_Z, 4, 'Z')
    A(f's_and_b32 s59, s{S_WG}, 63'); A('s_lshl_b32 s59, s59, 2')
    A(f'v_mov_b32 v{T0+16}, s59')
    A('s_mov_b64 exec, 1')
    A(f'global_atomic_add v{T0+16}, v{ONE}, s[22:23] sc1')
    A('s_mov_b64 exec, -1')
    A.label('L_nopost')
    res_init()
    prep_setup()
    prog = OPT.get('prog', 'P C F0 SC SP L F1 F2 F3 Z G0 F4 G1 F5 G2 F6 G3 F7').split()
    done = []
    for act in prog:
        if act[0] == 'F': finalize(int(act[1]))
        elif act == 'P': prep()
        elif act == 'C': spin(F_C, 4, 'C')
        elif act == 'SC': sort_count()
        elif act == 'SP': sort_place(); A('s_waitcnt lgkmcnt(0)')
        elif act[0] == 'T': stamp(A, int(act[1:]))
        elif act == 'V': A('s_waitcnt vmcnt(0)')
        elif act == 'L': A(f's_setprio {LP}')
        elif act == 'H': A(f's_setprio {HP}')
        elif act == 'Z': zero_check()
        elif act[0] == 'G': gather([int(act[1])]); done.append(int(act[1]))
    if 'T8' not in prog: stamp(A, 8)
    gather([k for k in range(6) if k not in done])
    A('s_branch L_tail')

    A.label('L_hspecial')
    idx_loads()
    A('s_waitcnt vmcnt(0)')
    prep_setup()
    prep()
    sort_count()
    sort_place()
    A('s_waitcnt lgkmcnt(0)')
    zero_check()
    def proxy(q):
        l = A.new('L_px'); e = A.new('L_pxx')
        A(f'v_mov_b32 v{T0+1}, {500*512 + 64*q + 63}')
        A('s_mov_b32 s79, 0')
        A.label(l)
        A(f'buffer_load_dword v{T0}, v{T0+1}, s[{SRD_TABI}:{SRD_TABI+3}], 0 idxen sc1')
        A('s_waitcnt vmcnt(0)')
        A(f'v_readfirstlane_b32 s60, v{T0}')
        A('s_add_u32 s79, s79, 1')
        A('s_cmp_lg_u32 s60, 0'); A(f's_cbranch_scc1 {e}')
        A('s_cmp_gt_u32 s79, 0x40000'); A(f's_cbranch_scc1 {e}')
        A('s_sleep 16')
        A(f's_branch {l}')
        A.label(e)
    for q, k in ((3, 0), (4, 1), (5, 2), (6, 3)):
        proxy(q); gather([k])
    gather([4, 5])

    A.label('L_tail')
    A('s_setprio 3')
    A('s_mov_b32 s78, 0')
    A.label('L_retry')
    A('s_waitcnt vmcnt(0)')
    A('s_mov_b32 s77, 0')
    for r in range(24):
        e = A.new('L_rt')
        A(f'v_cmp_eq_u32 vcc, 0, v{RES+r}')
        A(f's_cbranch_vccz {e}')
        A('s_mov_b64 exec, vcc')
        A(f'buffer_load_dword v{RES+r}, v{IDX+r}, s[{SRD_TABI}:{SRD_TABI+3}], 0 idxen sc1')
        A('s_mov_b64 exec, -1')
        A('s_mov_b32 s77, 1')
        A.label(e)
    A('s_add_u32 s78, s78, 1')
    A('s_cmp_eq_u32 s77, 0'); A('s_cbranch_scc1 L_soft')
    A('s_cmp_lt_u32 s78, 0x40000'); A('s_cbranch_scc1 L_retry')
    A.label('L_soft')
    stamp(A, 9)
    EE, SS = 96, 120
    MX, DEN, NUM = 144, 148, 152
    for r in range(24):
        A(f'v_lshlrev_b32 v{EE+r}, 16, v{RES+r}')
        A(f'v_and_b32 v{SS+r}, 0xffff0000, v{RES+r}')
    for bb in range(4):
        b = EE + 6*bb
        A(f'v_max3_f32 v{MX+bb}, v{b}, v{b+1}, v{b+2}')
        A(f'v_max3_f32 v{MX+bb}, v{MX+bb}, v{b+3}, v{b+4}')
        A(f'v_max_f32 v{MX+bb}, v{MX+bb}, v{b+5}')
    def reduce4(op, base):
        for sh in (8, 4, 2, 1):
            for bb in range(4):
                A(f'{op}_dpp v{base+bb}, v{base+bb}, v{base+bb} row_ror:{sh} row_mask:0xf bank_mask:0xf')
        for sw in ('v_permlane16_swap_b32', 'v_permlane32_swap_b32'):
            for bb in range(4): A(f'v_mov_b32 v{156+bb}, v{base+bb}')
            for bb in range(4): A(f'{sw} v{base+bb}, v{156+bb}')
            for bb in range(4): A(f'{op} v{base+bb}, v{base+bb}, v{156+bb}')
    A('s_nop 0')
    reduce4('v_max_f32', MX)
    for bb in range(4):
        for k in range(6):
            A(f'v_sub_f32 v{EE+6*bb+k}, v{EE+6*bb+k}, v{MX+bb}')
    for r in range(24): A(f'v_exp_f32 v{EE+r}, v{EE+r}')
    for bb in range(4):
        b = EE + 6*bb; s_ = SS + 6*bb
        A(f'v_add_f32 v{DEN+bb}, v{b}, v{b+1}')
        A(f'v_mul_f32 v{NUM+bb}, v{b}, v{s_}')
    for k in range(1, 6):
        for bb in range(4):
            b = EE + 6*bb; s_ = SS + 6*bb
            if k >= 2: A(f'v_add_f32 v{DEN+bb}, v{DEN+bb}, v{b+k}')
            A(f'v_fma_f32 v{NUM+bb}, v{b+k}, v{s_+k}, v{NUM+bb}')
    A('s_nop 0')
    reduce4('v_add_f32', DEN)
    reduce4('v_add_f32', NUM)
    for bb in range(4): A(f'v_rcp_f32 v{DEN+bb}, v{DEN+bb}')
    for bb in range(4): A(f'v_mul_f32 v{NUM+bb}, v{NUM+bb}, v{DEN+bb}')
    A(f'v_cvt_pk_bf16_f32 v160, v{NUM}, v{NUM+1}')
    A(f'v_cvt_pk_bf16_f32 v161, v{NUM+2}, v{NUM+3}')
    A(f's_lshl_b32 s59, s{S_WG}, 5'); A(f's_lshl_b32 s60, s{S_W}, 3'); A('s_add_u32 s59, s59, s60')
    A('v_mov_b32 v162, 0')
    A('s_mov_b64 exec, 1')
    A(f'buffer_store_dwordx2 v[160:161], v162, s[{SRD_OUT}:{SRD_OUT+3}], s59 offen')
    if STAMP:
        A('s_waitcnt vmcnt(0)')
        stamp(A, 10)
        stamp_store(A, 11, 200)
    A('s_endpgm')

def main(out):
    A = Asm()
    A.raw(HDR.rstrip())
    A.raw(f'; @launch grid=({NWG},1,1) block=(512,1,1) lds={LDS_BYTES}')
    A.raw('.amdgcn_target "amdgcn-amd-amdhsa--gfx950"')
    A.raw('.text')
    A.raw(f'.globl {KNAME}\n.p2align 8\n.type {KNAME},@function')
    A.label(KNAME)
    A(f's_cmp_ge_u32 s{S_WG}, {NWG}')
    A('s_cbranch_scc1 L_end')
    A('s_load_dwordx16 s[4:19], s[0:1], 0')
    A('s_load_dwordx4 s[20:23], s[0:1], 64')
    A('s_load_dwordx2 s[24:25], s[0:1], 80')
    A('v_lshrrev_b32 v221, 6, v0')
    A('v_and_b32 v223, 63, v0')
    A('s_nop 0')
    A(f'v_readfirstlane_b32 s{S_W8}, v221')
    A('v_mov_b32 v221, v223')
    A('s_nop 2')
    A(f's_and_b32 s{S_W}, s{S_W8}, 3')
    A(f's_lshl_b32 s{S_V1}, s{S_WG}, 2')
    A(f's_add_u32 s{S_V1}, s{S_V1}, s{S_W}')
    A(f's_cmp_ge_u32 s{S_W8}, 4')
    A('s_cbranch_scc1 L_help')
    mfma_wave(A)
    helper_wave(A)
    A.label('L_end')
    A('s_endpgm')
    A.raw('.section .rodata,"a"')
    A.raw('.p2align 6')
    A.raw(f'''.amdhsa_kernel {KNAME}
  .amdhsa_next_free_vgpr 256
  .amdhsa_next_free_sgpr 102
  .amdhsa_accum_offset 224
  .amdhsa_group_segment_fixed_size 0
  .amdhsa_kernarg_size 88
  .amdhsa_user_sgpr_count 2
  .amdhsa_user_sgpr_kernarg_segment_ptr 1
  .amdhsa_system_sgpr_workgroup_id_x 1
.end_amdhsa_kernel''')
    open(out, 'w').write(A.text())

if __name__ == '__main__':
    if '--stamp' in sys.argv: STAMP = True
    for a in sys.argv[2:]:
        if '=' in a:
            k, v = a.split('=', 1); OPT[k] = v
    main(sys.argv[1])
```
